```python
import torch

def _softmax(x, axis=-1):
    return torch.softmax(x, dim=axis)
def _gelu(x):
    return torch.nn.functional.gelu(x, approximate="tanh")
def _silu(x):
    return torch.nn.functional.silu(x)
def _sigmoid(x):
    return torch.sigmoid(x)
def _layernorm(x, axis=-1, eps=1e-5):
    m = x.mean(dim=axis, keepdim=True)
    v = x.var(dim=axis, keepdim=True, unbiased=False)
    return (x - m) / torch.sqrt(v + eps)
def _scatter_add(tgt, idx, src, axis=0):
    return tgt.clone().index_add_(axis, idx, src)
def _segment_sum(src, seg, n):
    out = torch.zeros((n,) + src.shape[1:], dtype=src.dtype)
    return out.index_add_(0, seg, src)
def _pad(x, pw):
    flat = tuple(v for pair in reversed(pw) for v in pair)
    return torch.nn.functional.pad(x, flat)

kernel_name = 'recurrent_scan__ssm_conv_h3__glu_gated_geglu__prompt'

def setup_inputs():

    _w = (lambda a: (lambda t: t.to(torch.bfloat16) if t.is_floating_point() else t)(torch.as_tensor(a)))
    def _A_setup():
        B, S, D = 1, 2048, 448
        ks = 4
        return {
            "q": _w((lambda *s: torch.randn(*s, dtype=torch.bfloat16) * 0.05)(B, S, D)),
            "k": _w((lambda *s: torch.randn(*s, dtype=torch.bfloat16) * 0.8)(B, S, D)),
            "v": _w((lambda *s: torch.randn(*s, dtype=torch.bfloat16) * 0.8)(B, S, D)),
            "shift_k": _w((lambda *s: torch.randn(*s, dtype=torch.bfloat16) * 0.8)(D, ks) * 0.5),
            "ssm_k": _w((lambda *s: torch.randn(*s, dtype=torch.bfloat16) * 1.6)(D, S) * (1.0 / S ** 0.5)),
            "ssm_D": _w((lambda *s: torch.randn(*s, dtype=torch.bfloat16) * 0.8)(D)),
        }
    _A_in = _A_setup()

    def _B_setup():
        B, S, Dm, Df = 1, 2048, 448, 1792
        return {
            "x": _w((lambda *s: torch.randn(*s, dtype=torch.bfloat16) * 0.05)(B, S, Dm)),
            "w_gate": _w((lambda *s: torch.randn(*s, dtype=torch.bfloat16) * 0.2)(Dm, Df) * (Dm ** -0.5)),
            "w_up": _w((lambda *s: torch.randn(*s, dtype=torch.bfloat16) * 0.2)(Dm, Df) * (Dm ** -0.5)),
            "w_down": _w((lambda *s: torch.randn(*s, dtype=torch.bfloat16) * 0.2)(Df, Dm) * (Df ** -0.5)),
        }
    _B_in = _B_setup()

    return {
        "A_q": _A_in["q"],
        "A_k": _A_in["k"],
        "A_v": _A_in["v"],
        "A_shift_k": _A_in["shift_k"],
        "A_ssm_k": _A_in["ssm_k"],
        "A_ssm_D": _A_in["ssm_D"],
        "B_x": _B_in["x"],
        "B_w_gate": _B_in["w_gate"],
        "B_w_up": _B_in["w_up"],
        "B_w_down": _B_in["w_down"],
    }

def reference(A_q, A_k, A_v, A_shift_k, A_ssm_k, A_ssm_D, B_x, B_w_gate, B_w_up, B_w_down):
    def _A_ref(q, k, v, shift_k, ssm_k, ssm_D):
        B, S, D = q.shape
        ks = shift_k.shape[-1]
        k_pad = _pad(k, ((0, 0), (ks - 1, 0), (0, 0)))
        k_shift = torch.zeros_like(k)
        for t in range(ks):
            k_shift = k_shift + k_pad[:, t:t + S, :] * shift_k[:, ks - 1 - t][None, None, :]
        kv = k_shift * v
        L = 2 * S
        kv_pad = _pad(kv, ((0, 0), (0, S), (0, 0)))
        kf_pad = _pad(ssm_k, ((0, 0), (0, S)))
        kv_f = (lambda x, axes=(-2,-1): torch.fft.rfft2(x.float(), dim=axes))(kv_pad[:, None, :, :], axes=(1, 2))
        kf_f = (lambda x, axes=(-2,-1): torch.fft.rfft2(x.float(), dim=axes))(kf_pad[:, None, :], axes=(1, 2))
        kf_f = (lambda x, *d: x.permute(*d))(kf_f, 1, 2, 0)
        y_f = kv_f * kf_f[None, :, :, :]
        y = (lambda x, s, axes=(-2,-1): torch.fft.irfft2(x, s=s, dim=axes).to(torch.bfloat16))(y_f, (1, L), axes=(1, 2))[:, 0, :S, :]
        y = y + kv * ssm_D[None, None, :]
        return q * y

    def _B_ref(x, w_gate, w_up, w_down):
        g = torch.einsum("bsd,df->bsf", x, w_gate)
        u = torch.einsum("bsd,df->bsf", x, w_up)
        h = _gelu(g) * u
        return torch.einsum("bsf,fd->bsd", h, w_down)

    x = A_q
    xn = _layernorm(x, axis=-1)
    s = _A_ref(xn, A_k, A_v, A_shift_k, A_ssm_k, A_ssm_D)
    g = _silu(_B_ref(xn, B_w_gate, B_w_up, B_w_down))
    return x + s * g
```

```python
import re

REG_RE = re.compile(r'^(-?)(abs\()?([vas])(\d+)\)?$')
RNG_RE = re.compile(r'^(-?)([vas])\[(\d+):(\d+)\]$')

def regs_of(tok):
    tok = tok.strip()
    m = REG_RE.match(tok)
    if m: return [(m.group(3), int(m.group(4)))]
    m = RNG_RE.match(tok)
    if m: return [(m.group(2), i) for i in range(int(m.group(3)), int(m.group(4)) + 1)]
    if tok == 'vcc': return [('s', 'vcc')]
    if tok == 'exec': return [('s', 'exec')]
    if tok == 'm0': return [('s', 'm0')]
    return []

TRANS = ('v_exp_f32', 'v_log_f32', 'v_rcp_f32', 'v_rsq_f32', 'v_sqrt_f32', 'v_sin_f32', 'v_cos_f32')

class Ins:
    __slots__ = ('text', 'op', 'rd', 'wr', 'kind', 'passes', 'mA', 'mC', 'mD', 'tag', 'pend', 'wide_store', 'is_dma', 'sdata')
    def __init__(self, text, tag=None):
        self.text = text; self.tag = tag
        t = text.split(';')[0].strip()
        parts = t.split(None, 1)
        op = parts[0]; self.op = op
        rest = parts[1] if len(parts) > 1 else ''
        ops = [o.strip() for o in rest.split(',')] if rest else []
        mods = ''
        if ops:
            sp = ops[-1].split(None, 1)
            ops[-1] = sp[0]; mods = sp[1] if len(sp) > 1 else ''
        R = [regs_of(o) for o in ops]
        rd, wr = [], []
        self.passes = 0; self.mA = []; self.mC = []; self.mD = []; self.pend = None
        self.wide_store = False; self.is_dma = False; self.sdata = []
        flat = lambda L: [x for l in L for x in l]
        if op.startswith('v_mfma'):
            self.kind = 'mfma'
            self.passes = 8 if '32x32' in op else (4 if '16x16' in op else 2)
            wr = R[0]; self.mD = R[0]; self.mA = R[1] + R[2]; self.mC = R[3]; rd = R[1] + R[2] + R[3]
        elif op.startswith('ds_read') or op.startswith('ds_bpermute') or op.startswith('ds_swizzle'):
            self.kind = 'ds'; wr = R[0]; rd = flat(R[1:]); self.pend = 'lgkm'
            if 'd16' in op: rd = rd + R[0]
        elif op.startswith('ds_write'):
            self.kind = 'ds'; rd = flat(R); self.pend = 'lgkm'
        elif op.startswith('buffer_load') or op.startswith('global_load'):
            self.kind = 'vmem'; self.pend = 'vm'
            if re.search(r'\blds\b', mods) or '_lds_' in op:
                rd = flat(R) + [('s', 'm0')]; self.is_dma = True
            else:
                wr = R[0]; rd = flat(R[1:])
                if 'd16' in op: rd = rd + R[0]
        elif op.startswith('buffer_store') or op.startswith('global_store') or op.startswith('buffer_atomic'):
            self.kind = 'vmem'; self.pend = 'vm'; rd = flat(R)
            self.sdata = R[0] if op.startswith('buffer') else R[1]
            self.wide_store = op.endswith('x4') or op.endswith('x3')
        elif op.startswith('v_'):
            self.kind = 'trans' if op.replace('_e32', '').replace('_e64', '') in TRANS else 'valu'
            if op.startswith('v_permlane') and 'swap' in op:
                rd = flat(R); wr = flat(R)
            elif op.startswith('v_nop'):
                pass
            else:
                wr = R[0]; rd = flat(R[1:])
                if op.startswith(('v_fmac', 'v_dot2c', 'v_mac')): rd = rd + R[0]
                if op.startswith('v_cndmask') and len(ops) == 3: rd = rd + [('s', 'vcc')]
                if op.startswith('v_cmpx'): wr = wr + [('s', 'exec')]
                if '_co_' in op and len(ops) >= 4: wr = R[0] + R[1]; rd = flat(R[2:])
                if 'dpp' in op or 'row_' in mods or 'quad_perm' in mods or 'wave_' in mods: rd = rd + R[0]
        elif op.startswith('s_load') or op in ('s_memtime', 's_memrealtime'):
            self.kind = 'smem'; wr = R[0]; rd = flat(R[1:]); self.pend = 'smem'
        elif op.startswith('s_'):
            self.kind = 'salu'
            if op.startswith(('s_cmp', 's_waitcnt', 's_barrier', 's_nop', 's_branch', 's_cbranch', 's_endpgm', 's_setprio', 's_sleep', 's_bitcmp', 's_setpc')):
                rd = flat(R)
            else:
                wr = R[0]; rd = flat(R[1:])
                if op.startswith(('s_addk', 's_mulk')): rd = rd + R[0]
                if 'saveexec' in op: wr = wr + [('s', 'exec')]; rd = rd + [('s', 'exec')]
        else:
            raise ValueError('unknown instr: ' + text)
        self.rd = set(rd); self.wr = set(wr)
        self.text = text

class Wait:
    def __init__(self, vm=None, lgkm=None, allvm=False, alllgkm=False):
        self.vm = vm or []; self.lgkm = lgkm or []; self.allvm = allvm; self.alllgkm = alllgkm
class Raw:
    def __init__(self, text, reset=False): self.text = text; self.reset = reset

class Asm:
    def __init__(self):
        self.items = []
    def __call__(self, text, tag=None):
        i = Ins(text, tag); self.items.append(i); return i
    def add(self, item):
        if isinstance(item, str): return self(item)
        self.items.append(item); return item
    def wait(self, **kw): self.items.append(Wait(**kw))
    def raw(self, text, reset=False): self.items.append(Raw(text, reset))
    def comment(self, text): self.items.append(Raw('; ' + text))

    def finalize(self, verbose=False):
        out = []
        vmq, lgq = [], []
        smem = False
        stats = {'waits': 0, 'nops': 0}
        def emit_wait(nvm, nlg):
            nonlocal vmq, lgq, smem
            parts = []
            if nvm is not None and nvm < len(vmq):
                nvm = min(nvm, 63); parts.append(f'vmcnt({nvm})'); vmq = vmq[len(vmq) - nvm:] if nvm else []
            if nlg is not None and (nlg < len(lgq) or (smem and nlg == 0)):
                nlg = min(nlg, 15)
                if smem: nlg = 0
                parts.append(f'lgkmcnt({nlg})'); lgq = lgq[len(lgq) - nlg:] if nlg else []
                if nlg == 0: smem = False
            if parts:
                out.append(Ins('s_waitcnt ' + ' '.join(parts))); stats['waits'] += 1
        smem_regs = set()
        seen = set()
        for it in self.items:
            if isinstance(it, Ins): seen.add(id(it))
            if isinstance(it, Wait):
                for o in list(it.vm) + list(it.lgkm): assert id(o) in seen, 'wait on op not yet issued: ' + o.text
            if isinstance(it, Raw):
                out.append(it)
                if it.reset: vmq, lgq, smem, smem_regs = [], [], False, set()
                continue
            if isinstance(it, Wait):
                nvm = nlg = None
                if it.allvm: nvm = 0
                if it.alllgkm: nlg = 0
                for o in it.vm:
                    if o in vmq:
                        n = len(vmq) - 1 - vmq.index(o); nvm = n if nvm is None else min(nvm, n)
                for o in it.lgkm:
                    if o in lgq:
                        n = len(lgq) - 1 - lgq.index(o); nlg = n if nlg is None else min(nlg, n)
                emit_wait(nvm, nlg)
                if not smem: smem_regs = set()
                continue
            touched = it.rd | it.wr
            nvm = nlg = None
            for k, o in enumerate(vmq):
                if o.wr & touched: nvm = len(vmq) - 1 - k
            for k, o in enumerate(lgq):
                if o.wr & touched: nlg = len(lgq) - 1 - k
            if smem and (smem_regs & touched): nlg = 0
            if smem and it.pend == 'lgkm': nlg = 0
            if it.op == 's_waitcnt':
                m = re.search(r'vmcnt\((\d+)\)', it.text)
                if m:
                    n = int(m.group(1)); vmq = vmq[len(vmq) - n:] if n and n < len(vmq) else ([] if n == 0 else vmq)
                m = re.search(r'lgkmcnt\((\d+)\)', it.text)
                if m:
                    n = int(m.group(1)); lgq = lgq[len(lgq) - n:] if n and n < len(lgq) else ([] if n == 0 else lgq)
                    if n == 0: smem = False; smem_regs = set()
                out.append(it); continue
            emit_wait(nvm, nlg)
            if not smem: smem_regs = set()
            out.append(it)
            if it.pend == 'vm':
                vmq.append(it)
                assert len(vmq) <= 63, 'too many outstanding vmem ops at: ' + it.text
            elif it.pend == 'lgkm': lgq.append(it)
            elif it.pend == 'smem': smem = True; smem_regs |= it.wr
        res = []
        hist = []
        def need(prev, cur):
            n = 0
            pv = prev.kind in ('valu', 'trans'); cv = cur.kind in ('valu', 'trans')
            pw = prev.wr
            if pv:
                vw = {r for r in pw if r[0] in 'va'}; sw = {r for r in pw if r[0] == 's'}
                if cur.kind == 'mfma' and (vw & cur.rd): n = max(n, 2)
                if cur.kind == 'mfma' and ('s', 'exec') in sw: n = max(n, 4)
                if cur.op.startswith(('v_readlane', 'v_readfirstlane')) and (vw & cur.rd): n = max(n, 1)
                if cur.op.startswith('v_permlane') and (vw & cur.rd): n = max(n, 2)
                if cv and ('row_' in cur.text or 'quad_perm' in cur.text or 'wave_' in cur.text) and (vw & cur.rd): n = max(n, 2)
                if cv and (sw & cur.rd): n = max(n, 4 if cur.op.startswith(('v_readlane', 'v_writelane')) else 2)
                if cur.kind == 'vmem' and (sw & cur.rd): n = max(n, 5)
                if cur.kind in ('salu', 'smem') and (sw & cur.rd): n = max(n, 2)
                if ('s', 'exec') in sw and cv: n = max(n, 5)
                if prev.kind == 'trans' and cv and (vw & cur.rd): n = max(n, 1)
                if prev.kind == 'trans' and cur.kind in ('vmem', 'ds') and (vw & cur.rd): n = max(n, 1)
                if (('op_sel' in prev.text and not prev.op.startswith('v_pk_')) or 'sdwa' in prev.text) and cv and (vw & (cur.rd | cur.wr)): n = max(n, 1)
            if prev.kind == 'mfma':
                D = set(prev.mD); p = prev.passes
                big = {2: 5, 4: 8, 8: 12}[p]
                if cur.kind == 'mfma':
                    if D & set(cur.mA): n = max(n, big)
                    if D & set(cur.mC):
                        if cur.mC == prev.mD and cur.passes == p: n = max(n, 2 if p == 2 else 0)
                        else: n = max(n, {2: 4, 4: 6, 8: 10}[p])
                    elif D & set(cur.mD): n = max(n, big)
                elif cur.kind in ('valu', 'trans', 'vmem', 'ds'):
                    if D & (cur.rd | cur.wr): n = max(n, big)
                if cv and (set(prev.mC) & cur.wr): n = max(n, {2: 1, 4: 3, 8: 7}[p])
            if prev.kind == 'salu' and ('s', 'm0') in pw and cur.is_dma: n = max(n, 1)
            if prev.wide_store and (set(prev.sdata) & cur.wr): n = max(n, 2 if cv else 1)
            return n
        for it in out:
            if isinstance(it, Raw):
                res.append(it.text); continue
            req = 0
            for (p, d) in hist:
                k = need(p, it) - d
                if k > req: req = k
            if req > 0:
                res.append(f'    s_nop {req - 1}'); stats['nops'] += req
                if verbose: res[-1] += f'   ; hazard before {it.op}'
                hist = [(p, d + req) for (p, d) in hist]
            res.append('    ' + it.text)
            inc = 1
            if it.op == 's_nop': inc = int(it.text.split()[1]) + 1
            hist = [(p, d + inc) for (p, d) in hist if d + inc < 20]
            hist.append((it, 0))
        self.stats = stats
        return '\n'.join(res)
```

```python
import sys, argparse
from asmfw import Asm, Ins, Wait, Raw

NAME = "recurrent_scan__ssm_conv_h3__glu_gated_geglu__prompt"
S, D, F = 2048, 448, 1792
WS_H, WS_KVR, WS_YT, WS_ST, WS_FL, WS_TS = 0, 8 << 20, 10 << 20, 12 << 20, 13 << 20, 14 << 20
WS_SIZE = 15 << 20
FL_B, FL_C, FL_A = 0, 4096, 4096 + 7 * 512
BIG = 0x7f000000
SLOT = 16384
CB = 5 * SLOT
KCH, KCP = 16640, 4160
RB, RCH = CB + 33280, 4608
XS1 = CB
XS2 = CB + 43008
BSLOT = [6, 7, 0, 1, 2, 3, 4]
DSLOT = [8, 9, 0, 1, 2, 3, 4]
LDS_BYTES = 163840
sX, sK, sV, sSH, sKF, sD, sWG, sWU, sWD, sOUT, sDBG, sWS = 4, 6, 8, 10, 12, 14, 18, 20, 22, 24, 26, 28
rX, rW, rWD, rWS, rKF, rOUT, rDBG = 32, 36, 40, 44, 48, 52, 56
sXO, sWO, sDO, sHO = 60, 67, 74, 81
sW, sLW, sRT, sFT, sRHO, sI, sJ, sT0, sT1, sT2, sT3 = 88, 89, 90, 91, 92, 93, 94, 95, 96, 97, 98
sM1, sM2, sMH = 16, 30, 0
sDV, sCNT = 99, 100
sHS = [6, 7, 8, 9]
sR64, sDT = 10, 11
def srd(r): return f"s[{r}:{r+3}]"
def v(a, n=1): return f"v{a}" if n == 1 else f"v[{a}:{a+n-1}]"
def a_(a, n=1): return f"a{a}" if n == 1 else f"a[{a}:{a+n-1}]"
def sp(a): return f"s[{a}:{a+1}]"
vL = 1
vXD, vWD_, vDD = 2, 6, 10
def vXR(st, b, s): return 14 + st * 8 + b * 4 + s
def vWR(st, al): return 30 + st * 2 + al
def vDR(st, dh): return 34 + st * 2 + dh
vH = [40, 41, 42, 43]
vA0, vA1, vIR = 44, 46, 48
vFLG = 50
vTMP = 51
vAC = [52, 56]; vBC = [60, 64]
vT, vN = 68, 72
vO = [76, 80]
vSB1 = 90; vONE = 94; vSUM, vSQ, vSA, vSB0 = 96, 100, 104, 108
def vWF(buf, al): return 112 + buf * 8 + al * 4
def vACC(g, al, be): return 128 + g * 64 + (2 * al + be) * 16
def aXF(s, st, be): return s * 32 + (st * 2 + be) * 4
def aWD(s, sg, dh): return s * 32 + (sg * 2 + dh) * 4
def aHA(s, sg, tg): return s * 32 + 16 + (sg * 2 + tg) * 4
HB_REGS = [v(44 + 4 * i, 4) for i in range(17)] + [a_(224 + 4 * i, 4) for i in range(8)] + [v(240 + 4 * i, 4) for i in range(3)]
def rHB(s, sg, tg): return HB_REGS[(s * 2 + sg) * 2 + tg]

C0 = -2.0 * 0.7978845608028654 * 1.4426950408889634
C1 = C0 * 0.044715
import struct
def fl(x): return "0x%08x" % struct.unpack("<I", struct.pack("<f", x))[0]

MF32 = "v_mfma_f32_32x32x16_bf16"
MF16 = "v_mfma_f32_16x16x32_bf16"
MF4 = "v_mfma_f32_4x4x4_16b_bf16"

def cost(it):
    if isinstance(it, str): it = Ins(it)
    if not isinstance(it, Ins): return 0
    return 8 if it.kind == 'trans' else 4

class Fill:
    def __init__(self): self.q = []
    def add(self, *its):
        r = None
        for it in its:
            if isinstance(it, str): it = Ins(it)
            self.q.append(it); r = it
        return r
    def take(self, A, budget):
        while self.q:
            c = cost(self.q[0])
            if c > budget and c > 0: break
            A.add(self.q.pop(0)); budget -= c
        return budget
    def flush(self, A):
        while self.q: A.add(self.q.pop(0))

class Gen:
    def __init__(self, opt):
        self.opt = opt; self.slow = []; self.nslow = 0; self.nts = 0
    def mksrd(self, A, r, p, size):
        A(f"s_mov_b32 s{r}, s{p}"); A(f"s_mov_b32 s{r+1}, s{p+1}"); A(f"s_mov_b32 s{r+2}, {size}"); A(f"s_mov_b32 s{r+3}, 0x20000")
    def stamp(self, A, name):
        if not self.opt.ts: return
        if self.opt.ts != 'all' and name not in self.opt.ts.split(','): return
        k = self.nts; self.nts += 1
        self.tsnames.append(name)
        assert k < 12
        A("s_memrealtime s[12:13]"); A("s_waitcnt lgkmcnt(0)")
        A(f"s_mov_b32 s{18+k}, s12")
    def poll_items(self, load_text, dst, n, level):
        k = self.nslow; self.nslow += 1
        ld = Ins(load_text)
        chk = []
        if n == 2: chk.append(Ins(f"v_min_u32 v{dst}, v{dst}, v{dst+1}"))
        chk += [Ins(f"v_cmp_gt_u32 vcc, {level}, v{dst}"), Ins(f"s_cbranch_vccnz L_slow{k}"), Raw(f"L_back{k}:")]
        sl = [f"L_slow{k}:", f"    s_mov_b32 s{sCNT}, 0x20000", f"L_slowl{k}:", "    " + load_text, "    s_waitcnt vmcnt(0)"]
        if n == 2: sl.append(f"    v_min_u32 v{dst}, v{dst}, v{dst+1}")
        sl += [f"    v_cmp_gt_u32 vcc, {level}, v{dst}", "    s_nop 4", f"    s_cbranch_vccz L_back{k}",
               f"    s_sub_u32 s{sCNT}, s{sCNT}, 1", f"    s_cmp_lg_u32 s{sCNT}, 0", f"    s_cbranch_scc1 L_slowl{k}", f"    s_branch L_back{k}"]
        self.slow += sl
        return ld, chk

    def entry(self):
        A = Asm()
        if self.opt.ts: A("s_memrealtime s[30:31]")
        A("s_cmp_ge_u32 s2, 256"); A("s_cbranch_scc1 L_exit")
        A("s_load_dwordx16 s[4:19], s[0:1], 0"); A("s_load_dwordx8 s[20:27], s[0:1], 64"); A("s_load_dwordx2 s[28:29], s[0:1], 96")
        A(f"v_and_b32 v{vL}, 63, v0"); A("v_lshrrev_b32 v2, 6, v0"); A(f"v_readfirstlane_b32 s{sW}, v2")
        A("s_cmp_ge_u32 s2, 224"); A("s_cbranch_scc1 L_helper")
        return A

    def main(self, A):
        o = self.opt
        L = f"v{vL}"
        self.vTS = 239; self.tsnames = []
        A(f"s_and_b32 s{sT0}, s2, 7"); A(f"s_lshr_b32 s{sT1}, s2, 3")
        A(f"s_and_b32 s{sI}, s{sT1}, 3"); A(f"s_lshr_b32 s{sJ}, s{sT1}, 2")
        A(f"s_lshr_b32 s{sRT}, s{sT0}, 1"); A(f"s_lshl_b32 s{sRT}, s{sRT}, 2"); A(f"s_add_u32 s{sRT}, s{sRT}, s{sI}")
        A(f"s_and_b32 s{sFT}, s{sT0}, 1"); A(f"s_mul_i32 s{sFT}, s{sFT}, 7"); A(f"s_add_u32 s{sFT}, s{sFT}, s{sJ}")
        A(f"s_lshl_b32 s{sRHO}, s{sI}, 1"); A(f"s_add_u32 s{sRHO}, s{sRHO}, s{sJ}")
        if o.norot: A(f"s_mov_b32 s{sRHO}, 0")
        for s in range(7):
            A(f"s_add_u32 s{sT1}, s{sRHO}, {s}")
            A(f"s_mul_i32 s{sT2}, s{sT1}, 37"); A(f"s_lshr_b32 s{sT2}, s{sT2}, 8"); A(f"s_mul_i32 s{sT2}, s{sT2}, 7"); A(f"s_sub_u32 s{sT1}, s{sT1}, s{sT2}")
            A(f"s_lshl_b32 s{sXO+s}, s{sT1}, 7"); A(f"s_mul_i32 s{sWO+s}, s{sT1}, {64*3584}")
        A(f"s_lshl_b32 s{sLW}, s{sW}, 12")
        A(f"v_lshrrev_b32 v44, 3, {L}"); A(f"v_and_b32 v45, 7, {L}"); A(f"v_lshrrev_b32 v46, 4, {L}")
        A(f"s_lshl_b32 s{sT1}, s{sRT}, 7"); A(f"s_lshl_b32 s{sT2}, s{sW}, 5"); A(f"s_add_u32 s{sT1}, s{sT1}, s{sT2}")
        A(f"v_add_u32 v47, s{sT1}, v44"); A("v_mul_u32_u24 v47, 896, v47")
        A("v_xor_b32 v48, v45, v46"); A(f"v_lshl_add_u32 v{vXD}, v48, 4, v47")
        A("v_xor_b32 v48, 4, v48"); A(f"v_lshl_add_u32 v{vXD+1}, v48, 4, v47"); A(f"v_add_u32 v{vXD+1}, 6144, v{vXD+1}")
        A(f"v_add_u32 v{vXD+2}, {2*6144}, v{vXD}"); A(f"v_add_u32 v{vXD+3}, {2*6144}, v{vXD+1}")
        A(f"s_and_b32 s{sT1}, s{sW}, 1"); A(f"s_mul_i32 s{sT1}, s{sT1}, {32*3584}"); A(f"s_lshl_b32 s{sT2}, s{sFT}, 8"); A(f"s_add_u32 s{sT1}, s{sT1}, s{sT2}")
        A("v_mul_u32_u24 v47, 3584, v44"); A(f"v_add_u32 v47, s{sT1}, v47")
        A(f"s_and_b32 s{sT2}, s{sW}, 2")
        A("v_and_b32 v48, 1, v46"); A(f"v_or_b32 v48, s{sT2}, v48"); A("v_lshlrev_b32 v48, 1, v48"); A("v_xor_b32 v48, v45, v48")
        A(f"v_lshl_add_u32 v{vWD_}, v48, 4, v47")
        for m in range(1, 4): A(f"v_add_u32 v{vWD_+m}, {m*27648}, v{vWD_}")
        self.mksrd(A, rX, sX, S * D * 2)
        if o.ts: A("s_mov_b32 s3, s30")
        A(f"s_cmp_ge_u32 s{sW}, 2"); A(f"s_cselect_b32 s{rW}, s{sWU}, s{sWG}"); A(f"s_cselect_b32 s{rW+1}, s{sWU+1}, s{sWG+1}")
        A(f"s_mov_b32 s{rW+2}, {D*F*2}"); A(f"s_mov_b32 s{rW+3}, 0x20000")
        def dma_x(s):
            base = 2 * (s & 3) * SLOT
            r = [Ins(f"s_add_u32 m0, s{sLW}, {base}")] if base else [Ins(f"s_mov_b32 m0, s{sLW}")]
            return r + [Ins(f"buffer_load_dwordx4 v{vXD+m}, {srd(rX)}, s{sXO+s} offen offset:{m*1024} lds") for m in range(4)]
        def dma_w(slot, s):
            base = slot * SLOT
            r = [Ins(f"s_add_u32 m0, s{sLW}, {base}")] if base else [Ins(f"s_mov_b32 m0, s{sLW}")]
            return r + [Ins(f"buffer_load_dwordx4 v{vWD_+m}, {srd(rW)}, s{sWO+s} offen offset:{m*1024} lds") for m in range(4)]
        def dma_d(s):
            base = DSLOT[s] * SLOT
            r = [Ins(f"s_add_u32 m0, s{sLW}, {base}")] if base else [Ins(f"s_mov_b32 m0, s{sLW}")]
            return r + [Ins(f"buffer_load_dwordx4 v{vDD+m}, {srd(rWD)}, s{sDO+s} offen offset:{m*1024} lds") for m in range(4)]
        stA = {}
        for s in range(4):
            for it in dma_x(s) + dma_w(2 * (s & 3) + 1, s): A.add(it)
            stA[s] = A.items[-1]
            if s == 0 and not o.nopf:
                A(f"s_getpc_b64 {sp(sM1)}"); A.raw("L_pc:")
                A("v_lshlrev_b32 v47, 7, v0"); A("v_min_u32 v47, L_exit-L_pc, v47"); A(f"global_load_dword v255, v47, {sp(sM1)}")
        A(f"s_and_b32 s{sT0}, s2, 7"); A(f"s_lshl_b32 s{sR64}, s{sT0}, 2"); A(f"s_add_u32 s{sR64}, s{sR64}, s{sI}"); A(f"s_mov_b32 s{sDT}, s{sJ}")
        A(f"s_lshl_b32 s{sT0}, s2, 2"); A(f"s_load_dword s{sDV}, {sp(sD)}, s{sT0}")
        self.mksrd(A, rWD, sWD, D * F * 2); self.mksrd(A, rWS, sWS, WS_SIZE); self.mksrd(A, rKF, sKF, D * S * 2)
        self.mksrd(A, rOUT, sOUT, S * D * 2); self.mksrd(A, rDBG, sDBG, 256)
        sTH, sFH = sT2, sT3
        A(f"s_and_b32 s{sTH}, s{sW}, 1"); A(f"s_lshr_b32 s{sFH}, s{sW}, 1")
        A(f"v_and_b32 v47, 31, {L}"); A(f"v_lshrrev_b32 v48, 5, {L}")
        A(f"v_bfe_u32 v49, {L}, 1, 3"); A("v_xor_b32 v49, v49, v48"); A("v_lshlrev_b32 v49, 4, v49"); A("v_lshl_add_u32 v49, v47, 7, v49")
        for b in range(2):
            A(f"s_xor_b32 s{sT0}, s{sFH}, {b}"); A(f"s_lshl_b32 s{sT0}, s{sT0}, 12"); A(f"s_lshl_b32 s{sT1}, s{sTH}, 13"); A(f"s_add_u32 s{sT0}, s{sT0}, s{sT1}")
            for s in range(4):
                A(f"v_xor_b32 v50, {32*s}, v49"); A(f"v_add_u32 v{vXR(0,b,s)}, s{sT0}, v50"); A(f"v_add_u32 v{vXR(1,b,s)}, 0x10000, v{vXR(0,b,s)}")
        A(f"v_bfe_u32 v50, {L}, 2, 2")
        A("v_lshl_add_u32 v51, v48, 3, v50")
        A("v_lshlrev_b32 v51, 7, v51")
        A(f"v_bfe_u32 v52, {L}, 4, 1")
        A(f"v_and_b32 v53, 1, {L}")
        A(f"v_bfe_u32 v54, {L}, 1, 1")
        A(f"v_bfe_u32 v55, {L}, 3, 1")
        A("v_lshl_add_u32 v56, v54, 13, v51"); A("v_lshl_add_u32 v56, v53, 4, v56"); A("v_lshl_add_u32 v56, v52, 3, v56")
        A("v_lshl_add_u32 v57, v54, 1, v55")
        for al in range(2):
            A(f"s_xor_b32 s{sT0}, s{sTH}, {al}"); A(f"s_lshl_b32 s{sT1}, s{sFH}, 1"); A(f"s_add_u32 s{sT0}, s{sT0}, s{sT1}")
            A(f"v_xor_b32 v58, s{sT0}, v57"); A(f"v_lshl_add_u32 v{vWR(0,al)}, v58, 5, v56"); A(f"v_add_u32 v{vWR(1,al)}, 0x10000, v{vWR(0,al)}")
        A("v_lshl_add_u32 v56, v53, 5, v51"); A("v_lshl_add_u32 v56, v52, 4, v56"); A("v_lshl_add_u32 v56, v54, 3, v56"); A(f"v_add_u32 v56, s{sLW}, v56")
        for dh in range(2):
            A(f"v_xor_b32 v58, {dh}, v55"); A(f"v_lshl_add_u32 v{vDR(0,dh)}, v58, 6, v56")
            A(f"v_add_u32 v{vDR(1,dh)}, 0x10000, v{vDR(0,dh)}"); A(f"v_add_u32 v{vDR(2,dh)}, 0x20000, v{vDR(0,dh)}")
        A("v_mul_u32_u24 v47, 896, v44"); A(f"s_lshl_b32 s{sT0}, s{sDT}, 7"); A(f"v_add_u32 v47, s{sT0}, v47")
        A("v_lshlrev_b32 v58, 2, v52"); A("v_xor_b32 v58, v45, v58"); A(f"v_lshl_add_u32 v{vDD}, v58, 4, v47")
        for m in range(1, 4): A(f"v_add_u32 v{vDD+m}, {m*6144}, v{vDD}")
        A(f"s_mul_i32 s{sT1}, s{sR64}, {2*112*1024}")
        for s in range(7):
            A(f"s_lshr_b32 s{sT0}, s{sXO+s}, 6"); A(f"s_mul_i32 s{sHO+s}, s{sW}, 14"); A(f"s_add_u32 s{sT0}, s{sT0}, s{sHO+s}")
            A(f"s_lshr_b32 s{sDO+s}, s{sT0}, 2"); A(f"s_lshl_b32 s{sDO+s}, s{sDO+s}, 7"); A(f"s_and_b32 s{sHO+s}, s{sT0}, 3"); A(f"s_lshl_b32 s{sHO+s}, s{sHO+s}, 4")
            A(f"s_add_u32 s{sDO+s}, s{sDO+s}, s{sHO+s}"); A(f"s_mul_i32 s{sDO+s}, s{sDO+s}, 896")
            A(f"s_lshl_b32 s{sHO+s}, s{sT0}, 10"); A(f"s_add_u32 s{sHO+s}, s{sHO+s}, s{sT1}")
        A(f"v_lshlrev_b32 v{vH[0]}, 4, {L}"); A(f"v_add_u32 v{vH[1]}, {112*1024}, v{vH[0]}")
        A(f"v_add_u32 v{vH[2]}, {56*1024}, v{vH[0]}"); A(f"v_add_u32 v{vH[3]}, {168*1024}, v{vH[0]}")
        for al in range(2):
            for b in range(2):
                d = sHS[2 * al + b]
                A(f"s_xor_b32 s{d}, s{sFH}, {b}"); A(f"s_lshl_b32 s{sT0}, s{sTH}, 1"); A(f"s_add_u32 s{d}, s{d}, s{sT0}"); A(f"s_lshl_b32 s{sT0}, s{sRT}, 2"); A(f"s_add_u32 s{d}, s{d}, s{sT0}")
                A(f"s_mul_i32 s{d}, s{d}, 112"); A(f"s_lshl_b32 s{sT0}, s{sFT}, 2"); A(f"s_add_u32 s{d}, s{d}, s{sT0}"); A(f"s_lshl_b32 s{sT0}, s{sFH}, 1"); A(f"s_add_u32 s{d}, s{d}, s{sT0}")
                A(f"s_xor_b32 s{sT0}, s{sTH}, {al}"); A(f"s_add_u32 s{d}, s{d}, s{sT0}"); A(f"s_lshl_b32 s{d}, s{d}, 10")
        A(f"s_mov_b32 s{sM1}, 0xaaaaaaaa"); A(f"s_mov_b32 s{sM1+1}, 0xaaaaaaaa"); A(f"s_mov_b32 s{sM2}, 0xcccccccc"); A(f"s_mov_b32 s{sM2+1}, 0xcccccccc")
        A(f"s_mov_b32 s{sMH}, 0"); A(f"s_mov_b32 s{sMH+1}, -1")
        A(f"v_mov_b32 v{vONE}, 0x3f803f80"); A(f"v_mov_b32 v{vONE+1}, 0x3f803f80")
        for r in (vAC[0], vAC[1], vBC[0], vBC[1]):
            A(f"v_mov_b32 v{r+2}, 0"); A(f"v_mov_b32 v{r+3}, 0")
        A(f"s_lshl_b32 s{sT0}, s{sRT}, 1"); A(f"s_add_u32 s{sT0}, s{sT0}, s{sTH}"); A(f"s_lshl_b32 s{sT0}, s{sT0}, 7")
        A(f"s_lshl_b32 s{sT1}, s{sFT}, 1"); A(f"s_add_u32 s{sT1}, s{sT1}, s{sFH}"); A(f"s_lshl_b32 s{sT1}, s{sT1}, 2"); A(f"s_add_u32 s{sT0}, s{sT0}, s{sT1}")
        A(f"s_add_u32 s{sT0}, s{sT0}, {WS_FL+FL_B}")
        A(f"v_mov_b32 v{vFLG}, {BIG}"); A(f"v_writelane_b32 v{vFLG}, s{sT0}, 0")
        A.wait(alllgkm=True)
        self.stamp(A, "setup")

        def xread(s, st, b):
            base = 2 * (s & 3) * SLOT
            return Ins(f"ds_read_b128 {a_(aXF(s,st,b),4)}, v{vXR(base>>16,b,st)} offset:{base & 0xffff}")
        def wread(slot, st, al, buf):
            base = slot * SLOT + st * 2048
            return [Ins(f"ds_read_b64_tr_b16 {v(vWF(buf,al)+2*e,2)}, v{vWR(base>>16,al)} offset:{(base & 0xffff) + e*512}") for e in range(2)]
        A.wait(vm=[stA[0]]); A("s_barrier")
        self.stamp(A, "a0")
        for it in [xread(0, 0, 0)] + wread(1, 0, 0, 0) + [xread(0, 0, 1)] + wread(1, 0, 1, 0): A.add(it)
        FQ = Fill()
        stB = {}; stD = {}
        kstep = 0
        for c in range(7):
            for st in range(4):
                buf = kstep & 1; nb = buf ^ 1
                first = (kstep == 0)
                def M(al, b):
                    acc = v(vACC(0, al, b), 16)
                    return f"{MF32} {acc}, {v(vWF(buf,al),4)}, {a_(aXF(c,st,b),4)}, {'0' if first else acc}"
                if st < 3:
                    nx = [xread(c, st + 1, 0), xread(c, st + 1, 1)]; nw0 = wread(2*(c&3)+1, st + 1, 0, nb); nw1 = wread(2*(c&3)+1, st + 1, 1, nb)
                elif c < 6:
                    nx = [xread(c + 1, 0, 0), xread(c + 1, 0, 1)]; nw0 = wread(2*((c+1)&3)+1, 0, 0, nb); nw1 = wread(2*((c+1)&3)+1, 0, 1, nb)
                else:
                    nx = []; nw0 = wread(BSLOT[0], 0, 0, nb); nw1 = wread(BSLOT[0], 0, 1, nb)
                if st == 3: A.wait(alllgkm=True)
                A(M(0, 0))
                if st == 3:
                    A.wait(vm=[stA[c + 1] if c < 6 else stB[0]]); A("s_barrier")
                    if c < 3:
                        FQ.add(*dma_x(c + 4)); stA[c + 4] = FQ.add(*dma_w(2 * (c & 3) + 1, c + 4))
                    else:
                        for b_ in ([0, 1], [2, 3], [4, 5], [6])[c - 3]:
                            FQ.add(f"s_add_u32 s{sWO+b_}, s{sWO+b_}, 128"); stB[b_] = FQ.add(*dma_w(BSLOT[b_], b_))
                        if c == 6:
                            stD[0] = FQ.add(*dma_d(0)); stD[1] = FQ.add(*dma_d(1))
                for it in nx[:1] + nw0: A.add(it)
                FQ.take(A, 24 - 4 * (len(nx[:1]) + 2))
                A(M(0, 1))
                for it in nx[1:] + nw1: A.add(it)
                FQ.take(A, 24 - 4 * (len(nx[1:]) + 2))
                A(M(1, 0)); FQ.take(A, 24)
                A(M(1, 1)); FQ.take(A, 24)
                x0 = aXF(c, st, 0); w0 = vWF(buf, 0)
                for hlf in range(2):
                    z = first and hlf == 0
                    A(f"{MF4} {v(vSUM,4)}, {v(vONE,2)}, {a_(x0+2*hlf,2)}, {'0' if z else v(vSUM,4)}")
                    A(f"{MF4} {v(vSQ,4)}, {a_(x0+2*hlf,2)}, {a_(x0+2*hlf,2)}, {'0' if z else v(vSQ,4)}")
                    A(f"{MF4} {v(vSA,4)}, {v(vONE,2)}, {v(w0+2*hlf,2)}, {'0' if z else v(vSA,4)}")
                kstep += 1
        self.stamp(A, "aend")

        def halves_sum(q, src, t):
            q.add(f"v_mov_b32 v{t}, v{src}", f"v_mov_b32 v{t+1}, v{src}", f"v_permlane32_swap_b32 v{t}, v{t+1}", f"v_add_f32 v{t}, v{t}, v{t+1}")
        def row_consts(q, b, d):
            q.add(f"v_rcp_f32 v{vTMP}, v{d}", f"v_mul_f32 v{vIR+b}, v{d}, v{d}", f"v_mul_f32 v{vA0+b}, {fl(C0)}, v{vTMP}",
                  f"v_mul_f32 v{vA1+b}, v{vTMP}, v{vTMP}", f"v_mul_f32 v{vA1+b}, v{vA1+b}, v{vTMP}", f"v_mul_f32 v{vA1+b}, {fl(C1)}, v{vA1+b}")
        def split3(q, src, dst, t):
            q.add(f"v_cvt_pk_bf16_f32 v{t}, v{src}, v{src}", f"v_and_b32 v{t+1}, 0xffff0000, v{t}", f"v_sub_f32 v{src}, v{src}, v{t+1}",
                  f"v_cvt_pk_bf16_f32 v{t+2}, v{src}, v{src}", f"v_and_b32 v{t+1}, 0xffff0000, v{t+2}", f"v_sub_f32 v{src}, v{src}, v{t+1}",
                  f"v_and_b32 v{t}, 0xffff, v{t}", f"v_or_b32 v{t}, v{t}, v{t+1}", f"v_cvt_pk_bf16_f32 v{t+2}, v{src}, 0",
                  f"v_cndmask_b32 v{dst}, v{t}, 0, {sp(sMH)}", f"v_cndmask_b32 v{dst+1}, v{t+2}, 0, {sp(sMH)}")
        q = FQ
        q.add(f"v_cndmask_b32 v14, v{vSQ}, v{vSQ+1}, {sp(sM1)}", f"v_cndmask_b32 v15, v{vSQ+2}, v{vSQ+3}, {sp(sM1)}", f"v_cndmask_b32 v14, v14, v15, {sp(sM2)}")
        halves_sum(q, vSUM, 16); halves_sum(q, 14, 18); halves_sum(q, vSA, 20)
        q.add(f"v_mul_f32 v16, {fl(-1.0/D)}, v16", f"v_mul_f32 v18, {fl(1.0/D)}, v18", "v_fma_f32 v18, -v16, v16, v18", "v_max_f32 v18, 0, v18",
              f"v_cvt_pk_bf16_f32 v{vBC[0]}, v16, v16", "v_cvt_pk_bf16_f32 v18, v18, v18", f"v_mov_b32 v{vBC[0]+1}, v{vBC[0]}", "v_and_b32 v18, 0xffff0000, v18",
              f"v_add_f32 v18, {fl(1e-5)}, v18", "v_cvt_pk_bf16_f32 v18, v18, v18", "v_and_b32 v18, 0xffff0000, v18", "v_sqrt_f32 v18, v18",
              f"v_mov_b32 v22, v{vBC[0]}", "v_cvt_pk_bf16_f32 v18, v18, v18", "v_and_b32 v23, 0xffff0000, v18")
        split3(q, 20, vAC[0], 24)
        q.add(f"s_lshl_b32 s{sT0}, s{sW}, 9", f"s_add_u32 s{sT0}, s{sT0}, {XS1}", f"v_lshl_add_u32 v28, {L}, 3, s{sT0}",
              "ds_write_b64 v28, v[22:23]", f"ds_write_b64 v28, {v(vAC[0],2)} offset:2048")
        row_consts(q, 0, 23)
        q.add(f"v_and_b32 v24, 0xffff0000, v22", f"v_mov_b32 v25, v{vTMP}",
              f"s_and_b32 s{sT0}, s{sW}, 1", f"s_lshl_b32 s{sT0}, s{sT0}, 1", f"s_lshr_b32 s{sT1}, s{sW}, 1", f"s_add_u32 s{sT0}, s{sT0}, s{sT1}",
              f"s_lshl_b32 s{sT1}, s{sRT}, 2", f"s_add_u32 s{sT0}, s{sT0}, s{sT1}", f"s_lshl_b32 s{sT0}, s{sT0}, 8", f"s_add_u32 s{sT0}, s{sT0}, {WS_ST}",
              f"s_cmp_eq_u32 s{sFT}, 0", f"s_cselect_b32 s{sT0}, s{sT0}, {BIG}", f"v_lshl_add_u32 v26, {L}, 3, s{sT0}", f"v_mov_b32 v27, {BIG}",
              f"v_cndmask_b32 v26, v26, v27, {sp(sMH)}")
        st_stats = q.add(f"buffer_store_dwordx2 v[24:25], v26, {srd(rWS)}, 0 offen sc1")
        q.add("v_xor_b32 v29, 1024, v28", "v_xor_b32 v28, 512, v28")
        ld_init, chk_init = self.poll_items(f"buffer_load_dword v{vSUM}, off, {srd(rDBG)}, 0 sc1", vSUM, 1, 1)
        q.add(ld_init)

        def geglu(q, g, al, b, ob):
            acc = vACC(g, al, b); out = vO[ob]
            for hf in range(2):
                G = acc + 8 * hf; U = G + 4
                for e in range(4): q.add(f"v_mul_f32 v{vT+e}, v{G+e}, v{G+e}")
                for e in range(4): q.add(f"v_fma_f32 v{vT+e}, v{vT+e}, v{vA1+b}, v{vA0+b}")
                for e in range(4): q.add(f"v_mul_f32 v{vT+e}, v{G+e}, v{vT+e}")
                for e in range(4): q.add(f"v_exp_f32 v{vT+e}, v{vT+e}", f"v_mul_f32 v{vN+e}, v{G+e}, v{U+e}")
                for e in range(4): q.add(f"v_fma_f32 v{vT+e}, v{vT+e}, v{vIR+b}, v{vIR+b}")
                for e in range(4): q.add(f"v_rcp_f32 v{vT+e}, v{vT+e}")
                for e in range(4): q.add(f"v_mul_f32 v{vN+e}, v{vN+e}, v{vT+e}")
                for e in range(2): q.add(f"v_cvt_pk_bf16_f32 v{out+2*hf+e}, v{vN+2*e}, v{vN+2*e+1}")
            return q.add(f"buffer_store_dwordx4 {v(out,4)}, v{vH[2*g]}, {srd(rWS)}, s{sHS[2*al+b]} offen sc1")
        def corr(g, al, b):
            acc = v(vACC(g, al, b), 16)
            return f"{MF32} {acc}, {v(vAC[al],4)}, {v(vBC[b],4)}, {acc}"
        kA, kB, kC, kO = [16, 24], [20, 84], [28, 29], [88 - 0, 2]
        kA = [16, 24]; kB = [20, 84]; kC = [14, 15]; kO = [2, 100]
        hstores = []
        for c in range(7):
            for st in range(4):
                buf = kstep & 1; nb = buf ^ 1
                first = (c == 0 and st == 0)
                def M(al, b):
                    acc = v(vACC(1, al, b), 16)
                    return f"{MF32} {acc}, {v(vWF(buf,al),4)}, {a_(aXF(c,st,b),4)}, {'0' if first else acc}"
                if st < 3: nw0 = wread(BSLOT[c], st + 1, 0, nb); nw1 = wread(BSLOT[c], st + 1, 1, nb)
                elif c < 6: nw0 = wread(BSLOT[c + 1], 0, 0, nb); nw1 = wread(BSLOT[c + 1], 0, 1, nb)
                else: nw0 = nw1 = []
                w0 = vWF(buf, 0)
                def smf():
                    A(f"{MF4} {v(vSB0,4)}, {v(vONE,2)}, {v(w0,2)}, {'0' if first else v(vSB0,4)}")
                    A(f"{MF4} {v(vSB1,4)}, {v(vONE,2)}, {v(w0+2,2)}, {'0' if first else v(vSB1,4)}")
                last = (c == 6 and st == 3)
                if c == 0 and st == 3: FQ.flush(A)
                if st == 3: A.wait(alllgkm=True)
                if last: smf()
                if c == 1 and st == 1:
                    for al in range(2):
                        for b in range(2): A(corr(0, al, b))
                    for al in range(2):
                        for b in range(2): hstores.append(geglu(FQ, 0, al, b, b))
                A(M(0, 0))
                if st == 3:
                    if c < 6: A.wait(vm=[stB[c + 1]])
                    A("s_barrier")
                    if c == 0:
                        A(f"ds_read_b64 v[22:23], v29"); A(f"ds_read_b64 {v(vAC[1],2)}, v28 offset:2048")
                        FQ.add(f"v_mov_b32 v{vBC[1]}, v22", f"v_mov_b32 v{vBC[1]+1}, v22"); row_consts(FQ, 1, 23)
                        FQ.add(f"s_lshl_b32 s{sT0}, s2, 13", f"s_lshl_b32 s{sT1}, s{sW}, 11", f"s_add_u32 s{sT0}, s{sT0}, s{sT1}")
                        for u in range(2):
                            FQ.add(f"buffer_load_dwordx4 {v(kA[u],4)}, v{vH[0]}, {srd(rKF)}, s{sT0} offen offset:{u*1024}",
                                   f"buffer_load_dwordx4 {v(kB[u],4)}, v{vH[0]}, {srd(rKF)}, s{sT0} offen offset:{u*1024+4}",
                                   f"buffer_load_dword v{kC[u]}, v{vH[0]}, {srd(rKF)}, s{sT0} offen offset:{u*1024+20}")
                    if c >= 2:
                        pre = Fill(); stD[c] = pre.add(*dma_d(c)); FQ.q = pre.q + FQ.q
                    if last:
                        pre = Fill()
                        pre.add(f"v_add_f32 v{vSB0}, v{vSB0}, v{vSB1}"); halves_sum(pre, vSB0, 20); split3(pre, 20, vAC[0], 24)
                        pre.add(f"ds_write_b64 v28, {v(vAC[0],2)}")
                        FQ.q = pre.q + FQ.q
                for it in nw0: A.add(it)
                FQ.take(A, 24 - 4 * len(nw0))
                A(M(0, 1))
                for it in nw1: A.add(it)
                FQ.take(A, 24 - 4 * len(nw1))
                A(M(1, 0)); FQ.take(A, 24)
                A(M(1, 1)); FQ.take(A, 24)
                if not last: smf()
                kstep += 1
                if c == 5 and st == 0:
                    FQ.add(f"s_lshr_b32 s{sT0}, s{sW}, 1", f"s_mul_i32 s{sT0}, s{sT0}, {KCH}", f"s_and_b32 s{sT1}, s{sW}, 1", f"s_lshl_b32 s{sT1}, s{sT1}, 11",
                           f"s_add_u32 s{sT0}, s{sT0}, s{sT1}", f"s_add_u32 s{sT0}, s{sT0}, {CB+32}", f"v_add_u32 v29, s{sT0}, v{vH[0]}")
                    for u in range(2):
                        a0, b0, c0 = kA[u], kB[u], kC[u]
                        FQ.add(f"ds_write_b128 v29, {v(a0,4)} offset:{u*1024}", f"ds_write_b128 v29, {v(b0,4)} offset:{u*1024+2*KCP}")
                        for e, (hi, lo) in enumerate([(a0+1, a0), (a0+2, a0+1), (a0+3, a0+2), (b0+3, a0+3)]): FQ.add(f"v_alignbit_b32 v{kO[0]+e}, v{hi}, v{lo}, 16")
                        FQ.add(f"ds_write_b128 v29, {v(kO[0],4)} offset:{u*1024+KCP}")
                        for e, (hi, lo) in enumerate([(b0+1, b0), (b0+2, b0+1), (b0+3, b0+2), (c0, b0+3)]): FQ.add(f"v_alignbit_b32 v{kO[1]+e}, v{hi}, v{lo}, 16")
                        FQ.add(f"ds_write_b128 v29, {v(kO[1],4)} offset:{u*1024+3*KCP}")
                    FQ.add(f"s_lshl_b32 s{sT0}, s{sW}, 9", f"s_add_u32 s{sT0}, s{sT0}, {XS2}", f"v_lshl_add_u32 v28, {L}, 3, s{sT0}")
                    FQ.add(*chk_init); FQ.add(Wait(vm=hstores + [st_stats]), f"v_mov_b32 v{vTMP}, 1", f"buffer_store_dword v{vTMP}, v{vFLG}, {srd(rWS)}, 0 offen sc1")
                if c == 6 and st == 1: FQ.flush(A)
        FQ.flush(A)
        self.stamp(A, "bend")
        A(f"v_and_b32 v14, 7, {L}"); A(f"v_bfe_u32 v15, {L}, 3, 2"); A(f"v_lshrrev_b32 v16, 5, {L}")
        A("v_lshl_add_u32 v17, v14, 1, v15"); A("v_subrev_u32 v17, 16, v17")
        A(f"s_lshl_b32 s{sT0}, s2, 13"); A("v_lshlrev_b32 v18, 12, v16"); A(f"v_add_u32 v18, s{sT0}, v18")
        A(f"v_mov_b32 v21, {BIG}")
        A("v_lshl_add_u32 v19, v17, 1, v18"); A("v_cmp_gt_i32 vcc, 0, v17"); A("v_cndmask_b32 v20, v19, v21, vcc")
        A("v_add_u32 v19, 2, v19"); A("v_cmp_gt_i32 vcc, -1, v17"); A("v_cndmask_b32 v19, v19, v21, vcc")
        A(f"buffer_load_ushort v22, v20, {srd(rKF)}, 0 offen"); A(f"buffer_load_ushort v23, v19, {srd(rKF)}, 0 offen")
        A(f"v_mul_u32_u24 v16, {KCH}, v16"); A(f"v_mul_u32_u24 v15, {KCP}, v15"); A("v_lshl_add_u32 v14, v14, 2, v15"); A(f"v_add3_u32 v14, v14, v16, v16") if False else None
        A("v_add_u32 v14, v14, v16"); A(f"v_add_u32 v14, {CB}, v14")
        A(f"v_lshlrev_b32 v15, 3, {L}"); A(f"v_add_u32 v15, {WS_FL+FL_A}, v15")
        ldA, chkA = self.poll_items(f"buffer_load_dwordx2 v[16:17], v15, {srd(rWS)}, 0 offen sc1", 16, 2, 1)
        A.add(ldA)
        A.wait(alllgkm=True); A("s_barrier")
        A("v_xor_b32 v28, 512, v28"); A(f"ds_read_b64 {v(vAC[1],2)}, v28")
        A(corr(1, 0, 0)); A(corr(1, 0, 1))
        q = Fill(); hst = []
        hst.append(geglu(q, 1, 0, 0, 0)); q.flush(A)
        for it in chkA: A.add(it)
        A(f"s_lshl_b32 s{sT0}, s2, 13"); A(f"s_lshl_b32 s{sT1}, s{sW}, 11"); A(f"s_add_u32 s{sT0}, s{sT0}, s{sT1}"); A(f"s_add_u32 s{sT0}, s{sT0}, {WS_KVR}")
        for u in range(2): A(f"buffer_load_dwordx4 {a_(224+4*u,4)}, v{vH[0]}, {srd(rWS)}, s{sT0} offen offset:{u*1024} sc1")
        A("v_lshl_or_b32 v22, v23, 16, v22"); A("ds_write_b32 v14, v22")
        A(corr(1, 1, 0)); A(corr(1, 1, 1))
        hst.append(geglu(q, 1, 0, 1, 1)); q.flush(A)
        def dread(s, sg, dh, dst):
            base = DSLOT[s] * SLOT + sg * 2048
            f = a_ if dst[0] == 'a' else v
            return [Ins(f"ds_read_b64_tr_b16 {f(dst[1]+2*e,2)}, v{vDR(base>>16,dh)} offset:{(base & 0xffff) + e*512}") for e in range(2)]
        stDB = {}
        def d_move(q, s):
            q.add(Wait(vm=[stD[s]]))
            rds = [it for sg in range(2) for dh in range(2) for it in dread(s, sg, dh, ('a', aWD(s, sg, dh)))]
            q.add(*rds)
            return rds
        def d_refill(q, s, rds):
            q.add(f"s_add_u32 s{sDO+s}, s{sDO+s}, {64*896}", Wait(lgkm=rds)); stDB[s] = q.add(*dma_d(s))
        g2 = Fill(); hst.append(geglu(g2, 1, 1, 0, 0)); hst.append(geglu(g2, 1, 1, 1, 1))
        mv = Fill(); prev = None
        for s in range(7):
            r = d_move(mv, s)
            if prev: d_refill(mv, *prev)
            prev = (s, r)
        d_refill(mv, *prev)
        while g2.q or mv.q:
            g2.take(A, 12); mv.take(A, 4)
        A(f"s_lshr_b32 s{sT0}, s{sW}, 1"); A(f"s_mul_i32 s{sT0}, s{sT0}, {RCH}"); A(f"s_and_b32 s{sT1}, s{sW}, 1"); A(f"s_lshl_b32 s{sT1}, s{sT1}, 11")
        A(f"s_add_u32 s{sT2}, s{sT0}, {RB}"); A(f"s_add_u32 s{sT0}, s{sT2}, s{sT1}"); A(f"v_add_u32 v14, s{sT0}, v{vH[0]}")
        for u in range(2): A(f"ds_write_b128 v14, {a_(224+4*u,4)} offset:{u*1024}")
        A(f"v_lshl_add_u32 v15, {L}, 3, s{sT2}"); A("v_mov_b32 v16, 0"); A("v_mov_b32 v17, 0"); A("ds_write_b64 v15, v[16:17] offset:4096")
        cACC, cA, cB, cD = 128, 160, 192, 224
        cvA, cvB = 18, 19
        A(f"v_and_b32 v20, 15, {L}"); A(f"v_lshrrev_b32 v21, 4, {L}")
        A("v_add_u32 v22, 1, v20"); A("v_and_b32 v23, 3, v22"); A(f"v_mul_u32_u24 v23, {KCP}, v23"); A("v_and_b32 v22, 28, v22")
        A("v_lshl_add_u32 v22, v21, 3, v22"); A(f"v_lshl_add_u32 v{cvA}, v22, 1, v23")
        A(f"s_lshr_b32 s{sT0}, s{sW}, 1"); A(f"s_mul_i32 s{sT0}, s{sT0}, {KCH}"); A(f"s_lshr_b32 s{sT1}, s{sT1}, 3"); A(f"s_add_u32 s{sT0}, s{sT0}, s{sT1}"); A(f"s_add_u32 s{sT0}, s{sT0}, {CB}")
        A(f"v_add_u32 v{cvA}, s{sT0}, v{cvA}")
        A("v_lshlrev_b32 v22, 4, v21"); A("v_lshlrev_b32 v23, 5, v20"); A("v_sub_u32 v22, v22, v23")
        A(f"s_add_u32 s{sT2}, s{sT2}, s{sT1}"); A(f"s_add_u32 s{sT2}, s{sT2}, 480"); A(f"v_add_u32 v{cvB}, s{sT2}, v22")
        A(f"s_lshr_b32 s{sT0}, s{sW}, 1"); A(f"s_lshl_b32 s{sT0}, s{sT0}, 4"); A(f"s_lshr_b32 s{sDV}, s{sDV}, s{sT0}"); A(f"s_and_b32 s{sDV}, s{sDV}, 0xffff")
        A(f"s_bitcmp1_b32 s{sW}, 0"); A(f"s_cselect_b32 s{sDV}, 0, s{sDV}")
        A("v_lshl_add_u32 v22, v21, 3, v20"); A("v_sub_u32 v22, 15, v22")
        A("v_and_b32 v23, 1, v22"); A("v_lshlrev_b32 v23, 4, v23"); A(f"v_lshlrev_b32 v23, v23, s{sDV}"); A("v_ashrrev_i32 v22, 1, v22")
        for e in range(4):
            A(f"v_cmp_eq_u32 vcc, {e}, v22"); A(f"v_cndmask_b32 v{cD+e}, 0, v23, vcc")
        A(f"v_min_u32 v20, 27, {L}"); A(f"s_lshl_b32 s{sT0}, s{sR64}, 7"); A(f"s_add_u32 s{sT0}, s{sT0}, {WS_FL+FL_B}"); A(f"v_lshl_add_u32 v20, v20, 2, s{sT0}")
        ldB1, chkB1 = self.poll_items(f"buffer_load_dword v21, v20, {srd(rWS)}, 0 offen sc1", 21, 1, 1)
        ldB2, chkB2 = self.poll_items(f"buffer_load_dword v21, v20, {srd(rWS)}, 0 offen sc1", 21, 1, 2)
        A.add(ldB1)
        A.wait(alllgkm=True); A("s_barrier")
        self.stamp(A, "conv0")
        def cra(a, jj): return [Ins(f"ds_read_b64 {v(cA+4*a+2*e,2)}, v{cvA} offset:{512*a+64*jj+8*e}") for e in range(2)]
        def crb(c, jj): return [Ins(f"ds_read_b128 {v(cB+4*c,4)}, v{cvB} offset:{512*(7-c)+64*jj}")]
        for c in range(7, -1, -1): A.add(crb(c, 0)[0])
        for a in range(8):
            for it in cra(a, 0): A.add(it)
        FQ = Fill()
        FQ.add(Wait(vm=hst), f"v_mov_b32 v{vTMP}, 2", f"buffer_store_dword v{vTMP}, v{vFLG}, {srd(rWS)}, 0 offen sc1")
        FQ.add(*chkB1)
        for s in range(7):
            for sg in range(2):
                for tg in range(2): FQ.add(f"buffer_load_dwordx4 {a_(aHA(s,sg,tg),4)}, v{vH[tg]}, {srd(rWS)}, s{sHO+s} offen offset:{sg*1024} sc1")
        for c in range(7, -1, -1): A(f"{MF16} {v(cACC+4*c,4)}, {v(cD,4)}, {v(cB+4*c,4)}, 0")
        for jj in range(4):
            if jj == 3:
                FQ.add(ldB2)
            for a in range(8):
                for c in range(7 - a, -1, -1):
                    acc = v(cACC + 4 * (a + c), 4)
                    A(f"{MF16} {acc}, {v(cA+4*a,4)}, {v(cB+4*c,4)}, {acc}")
                    rl = []
                    if jj < 3:
                        if c == 7 - a: rl += crb(c, jj + 1)
                        if c == 0: rl += cra(a, jj + 1)
                    for it in rl: A.add(it)
                    FQ.take(A, 8 - 4 * len(rl))
        FQ.flush(A)
        self.stamp(A, "conv1")
        A(f"s_lshl_b32 s{sT0}, s{sW}, 12"); A(f"s_add_u32 s{sT0}, s{sT0}, {CB}"); A(f"v_add_u32 v14, s{sT0}, v{vH[0]}"); A("v_xor_b32 v15, 4096, v14")
        A("s_barrier")
        A(f"s_bitcmp1_b32 s{sW}, 0"); A(f"s_cselect_b64 vcc, -1, 0")
        for r in range(16):
            A(f"v_cndmask_b32 v{cA+r}, v{cACC+16+r}, v{cACC+r}, vcc"); A(f"v_cndmask_b32 v{cACC+r}, v{cACC+r}, v{cACC+16+r}, vcc")
            if r % 4 == 3: A(f"ds_write_b128 v14, {v(cA+r-3,4)} offset:{(r//4)*1024}")
        A.wait(alllgkm=True); A("s_barrier")
        for k in range(4): A(f"ds_read_b128 {v(cA+16+4*k,4)}, v15 offset:{k*1024}")
        A(f"v_and_b32 v16, 15, {L}"); A(f"v_lshrrev_b32 v17, 4, {L}"); A("v_lshlrev_b32 v17, 3, v17"); A("v_lshl_add_u32 v16, v16, 5, v17")
        A(f"s_lshl_b32 s{sT0}, s2, 13"); A(f"s_lshl_b32 s{sT1}, s{sW}, 11"); A(f"s_add_u32 s{sT0}, s{sT0}, s{sT1}"); A(f"s_add_u32 s{sT0}, s{sT0}, {WS_YT}")
        for it in chkB2: A.add(it)
        HBL = Fill()
        for s in range(7):
            for sg in range(2):
                for tg in range(2): HBL.add(f"buffer_load_dwordx4 {rHB(s,sg,tg)}, v{vH[2+tg]}, {srd(rWS)}, s{sHO+s} offen offset:{sg*1024} sc1")
        yst = []
        for k in range(4):
            for r in range(4): A(f"v_add_f32 v{cACC+4*k+r}, v{cACC+4*k+r}, v{cA+16+4*k+r}")
            A(f"v_cvt_pk_bf16_f32 v{cB+2*k}, v{cACC+4*k}, v{cACC+4*k+1}"); A(f"v_cvt_pk_bf16_f32 v{cB+2*k+1}, v{cACC+4*k+2}, v{cACC+4*k+3}")
            yst.append(A(f"buffer_store_dwordx2 {v(cB+2*k,2)}, v16, {srd(rWS)}, s{sT0} offen offset:{k*512} sc1"))
        self.stamp(A, "conv2")
        def fACC(tg, dh): return 128 + (tg * 2 + dh) * 16
        FQ = Fill()
        FQ.q += HBL.q[:12]
        FQ.add(f"s_lshl_b32 s{sT0}, s2, 4", f"s_lshl_b32 s{sT1}, s{sW}, 2", f"s_add_u32 s{sT0}, s{sT0}, s{sT1}", f"s_add_u32 s{sT0}, s{sT0}, {WS_FL+FL_C}",
               f"v_mov_b32 v14, {BIG}", f"v_writelane_b32 v14, s{sT0}, 0", Wait(vm=yst), "v_mov_b32 v15, 1", f"buffer_store_dword v15, v14, {srd(rWS)}, 0 offen sc1")
        FQ.q += HBL.q[12:]
        eX, eST, eY, eP, eXF = 192, 200, 204, 212, 2
        eXF = 14 + 4
        eOF = 228
        FQ.add(f"v_lshrrev_b32 v16, 3, {L}", f"v_and_b32 v17, 7, {L}",
               f"s_lshl_b32 s{sT0}, s{sR64}, 6", f"s_lshl_b32 s{sT1}, s{sW}, 3", f"s_add_u32 s{sT0}, s{sT0}, s{sT1}", f"v_add_u32 v230, s{sT0}, v16",
               f"v_mul_u32_u24 v{eOF}, 896, v230", f"s_lshl_b32 s{sT1}, s{sDT}, 7", f"v_lshl_add_u32 v{eOF}, v17, 4, v{eOF}", f"v_add_u32 v{eOF}, s{sT1}, v{eOF}",
               f"v_add_u32 v{eOF+1}, {32*896}, v{eOF}", "v_lshlrev_b32 v230, 3, v230", f"v_add_u32 v230, {WS_ST}, v230")
        for tg in range(2):
            FQ.add(f"buffer_load_dwordx4 {v(eX+4*tg,4)}, v{eOF+tg}, {srd(rX)}, 0 offen", f"buffer_load_dwordx2 {v(eST+2*tg,2)}, v230, {srd(rWS)}, 0 offen offset:{tg*256} sc1")
        FQ.add(f"s_lshl_b32 s{sT0}, s{sDT}, 9", f"s_add_u32 s{sT0}, s{sT0}, {WS_FL+FL_C}", f"v_lshl_add_u32 v231, {L}, 3, s{sT0}")
        ldC, chkC = self.poll_items(f"buffer_load_dwordx2 v[232:233], v231, {srd(rWS)}, 0 offen sc1", 232, 2, 1)
        n = 0
        def bfr(k): return 112 + 8 * (k & 1)
        steps = [(g, s, sg) for g in range(2) for s in range(7) for sg in range(2)]
        def bread(k):
            g, s, sg = steps[k]
            r = [Wait(vm=[stDB[s]])] if sg == 0 else []
            return r + dread(s, sg, 0, ('v', bfr(k))) + dread(s, sg, 1, ('v', bfr(k) + 4))
        YB = CB + 32768
        ybar = None
        for k, (g, s, sg) in enumerate(steps):
            if k == 10: FQ.add(ldC)
            if k == 14:
                FQ.add(*chkC)
                FQ.add(f"s_lshl_b32 s{sT0}, s{sDT}, 6", f"s_lshl_b32 s{sT1}, s{sW}, 4", f"s_add_u32 s{sT0}, s{sT0}, s{sT1}", f"s_lshl_b32 s{sT0}, s{sT0}, 12",
                       f"s_lshl_b32 s{sT1}, s{sR64}, 7", f"s_add_u32 s{sT0}, s{sT0}, s{sT1}", f"s_add_u32 s{sT0}, s{sT0}, {WS_YT}",
                       "v_lshlrev_b32 v231, 12, v16", "v_lshl_add_u32 v231, v17, 4, v231", f"v_add_u32 v232, 32768, v231")
                FQ.add(f"buffer_load_dwordx4 {v(eY,4)}, v231, {srd(rWS)}, s{sT0} offen sc1", f"buffer_load_dwordx4 {v(eY+4,4)}, v232, {srd(rWS)}, s{sT0} offen sc1")
                for tg in range(2):
                    for e in range(4):
                        FQ.add(f"v_lshlrev_b32 v{eXF+8*tg+2*e}, 16, v{eX+4*tg+e}", f"v_and_b32 v{eXF+8*tg+2*e+1}, 0xffff0000, v{eX+4*tg+e}")
                    for e in range(8): FQ.add(f"v_add_f32 v{eP+8*tg+e}, v{eXF+8*tg+e}, v{eST+2*tg}")
                    for e in range(8): FQ.add(f"v_mul_f32 v{eP+8*tg+e}, v{eP+8*tg+e}, v{eST+2*tg+1}")
                FQ.add(f"s_lshl_b32 s{sT0}, s{sW}, 1", f"v_xor_b32 v231, s{sT0}, v17", "v_lshlrev_b32 v231, 4, v231", "v_lshl_add_u32 v231, v16, 7, v231",
                       f"s_lshl_b32 s{sT0}, s{sW}, 11", f"s_add_u32 s{sT0}, s{sT0}, {YB}", f"v_add_u32 v231, s{sT0}, v231", "v_xor_b32 v232, 16, v231")
                FQ.add(f"ds_write_b128 v231, {v(eY,4)}", f"ds_write_b128 v232, {v(eY+4,4)} offset:1024")
                FQ.add(f"v_xor_b32 v231, s{sW}, v17", "v_lshlrev_b32 v231, 4, v231", "v_lshl_add_u32 v231, v17, 10, v231", "v_lshl_add_u32 v231, v16, 1, v231",
                       f"v_add_u32 v231, {YB}, v231", "v_xor_b32 v232, 64, v231")
                for e in range(8): FQ.add(f"v_mov_b32 v{eX+e}, 0", )
                for e in range(8): FQ.add(f"v_mov_b32 v{eY+e}, 0") if e < 0 else None
            if k == 23:
                FQ.flush(A); A.wait(alllgkm=True); A("s_barrier")
                for e in range(8): FQ.add(f"v_mov_b32 v{eY+e}, 0")
                for e in range(8): FQ.add(f"ds_read_u16_d16_hi v{eX+e}, v231 offset:{e*128}")
                for e in range(8): FQ.add(f"ds_read_u16_d16_hi v{eY+e}, v232 offset:{e*128}")
                for e in range(8): FQ.add(f"v_mul_f32 v{eP+e}, v{eP+e}, v{eX+e}")
                for e in range(8): FQ.add(f"v_mul_f32 v{eP+8+e}, v{eP+8+e}, v{eY+e}")
            nxt = bread(k + 1) if (k + 1 < 28 and steps[k + 1][0] == 1) else []
            for i_, (tg, dh) in enumerate([(0, 0), (1, 0), (0, 1), (1, 1)]):
                acc = v(fACC(tg, dh), 16)
                wa = a_(aWD(s, sg, dh), 4) if g == 0 else v(bfr(k) + 4 * dh, 4)
                hb = a_(aHA(s, sg, tg), 4) if g == 0 else rHB(s, sg, tg)
                A(f"{MF32} {acc}, {wa}, {hb}, {'0' if k == 0 else acc}")
                bud = 24
                if i_ == 0:
                    for it in nxt[:-2]: A.add(it); bud -= cost(it)
                if i_ == 1:
                    for it in nxt[-2:]: A.add(it); bud -= cost(it)
                FQ.take(A, bud)
        FQ.flush(A)
        self.stamp(A, "f2end")
        A(f"v_and_b32 v34, 31, {L}"); A(f"v_lshrrev_b32 v35, 5, {L}"); A(f"v_and_b32 v36, 7, {L}")
        A("v_lshlrev_b32 v35, 2, v35"); A("v_xor_b32 v35, v35, v36"); A("v_lshlrev_b32 v35, 4, v35"); A("v_lshl_add_u32 v35, v34, 8, v35")
        A(f"s_lshl_b32 s{sT0}, s{sW}, 13"); A(f"v_add_u32 v34, s{sT0}, v35")
        for j in range(1, 4): A(f"v_xor_b32 v{34+j}, {16*j}, v34")
        A(f"s_lshl_b32 s{sT0}, s{sW}, 11"); A("v_lshlrev_b32 v38, 1, v17"); A("v_xor_b32 v38, v38, v16"); A("v_lshlrev_b32 v38, 4, v38"); A("v_lshl_add_u32 v38, v16, 8, v38")
        A(f"v_add_u32 v38, s{sT0}, v38"); A("v_xor_b32 v39, 16, v38")
        A("s_barrier")
        for tg in range(2):
            for dh in range(2):
                for j in range(4): A(f"ds_write_b128 v{34+j}, {v(fACC(tg,dh)+4*j,4)} offset:{tg*32768+dh*128}")
        A.wait(alllgkm=True); A("s_barrier")
        pr = 44
        for tg in range(2):
            for ww in range(4):
                for j in range(2): A(f"ds_read_b128 {v(pr+tg*32+ww*8+4*j,4)}, v{38+j} offset:{tg*32768+ww*8192}")
        LOG2E = 1.4426950408889634
        for tg in range(2):
            b = pr + tg * 32
            for e in range(8): A(f"v_add_f32 v{b+e}, v{b+e}, v{b+8+e}")
            for e in range(8): A(f"v_add_f32 v{b+16+e}, v{b+16+e}, v{b+24+e}")
            for e in range(8): A(f"v_add_f32 v{b+e}, v{b+e}, v{b+16+e}")
            for e in range(8): A(f"v_mul_f32 v{b+8+e}, {fl(-LOG2E)}, v{b+e}")
            for e in range(8): A(f"v_exp_f32 v{b+8+e}, v{b+8+e}"); A(f"v_mul_f32 v{b+e}, v{b+e}, v{eP+8*tg+e}")
            for e in range(8): A(f"v_add_f32 v{b+8+e}, 1.0, v{b+8+e}")
            for e in range(8): A(f"v_rcp_f32 v{b+8+e}, v{b+8+e}")
            for e in range(8): A(f"v_fma_f32 v{b+e}, v{b+e}, v{b+8+e}, v{eXF+8*tg+e}")
            for e in range(4): A(f"v_cvt_pk_bf16_f32 v{b+16+e}, v{b+2*e}, v{b+2*e+1}")
            A(f"buffer_store_dwordx4 {v(b+16,4)}, v{eOF+tg}, {srd(rOUT)}, 0 offen")
        self.stamp(A, "end")
        if o.ts:
            A("v_mov_b32 v3, s3")
            for k in range(self.nts): A(f"v_writelane_b32 v3, s{18+k}, {k+1}")
            A(f"v_lshlrev_b32 v2, 2, v0"); A(f"s_lshl_b32 s{sT0}, s2, 10"); A(f"s_add_u32 s{sT0}, s{sT0}, {WS_TS}")
            A(f"buffer_store_dword v3, v2, {srd(rWS)}, s{sT0} offen")
        A("s_endpgm")
        return A

    def helper(self):
        o = self.opt
        A = Asm(); L = f"v{vL}"
        A.raw("L_helper:")
        A("s_waitcnt lgkmcnt(0)")
        rK, rV, rSH = 32, 36, 40
        sHW = 60
        self.mksrd(A, rK, sK, S * D * 2); self.mksrd(A, rV, sV, S * D * 2); self.mksrd(A, rSH, sSH, D * 8)
        self.mksrd(A, rWS, sWS, WS_SIZE); self.mksrd(A, rDBG, sDBG, 256)
        A(f"s_sub_u32 s{sHW}, s2, 224")
        A(f"s_or_b32 s{sT0}, s{sHW}, s{sW}"); A(f"s_cmp_eq_u32 s{sT0}, 0"); A(f"s_cselect_b32 s{sT3}, 0, {BIG}"); A(f"s_add_u32 s{sT0}, s{sT3}, {WS_FL}")
        A(f"v_lshl_add_u32 v2, {L}, 4, s{sT0}"); A("v_add_u32 v3, 4096, v2")
        for e in range(4): A(f"v_mov_b32 v{4+e}, 0")
        clr = [A(f"buffer_store_dwordx4 v[4:7], v{2+(m>>2)}, {srd(rWS)}, 0 offen offset:{(m&3)*1024} sc1") for m in range(8)]
        A(f"s_lshl_b32 s{sT0}, s{sHW}, 6"); A(f"s_lshl_b32 s{sT1}, s{sW}, 4"); A(f"s_add_u32 s{sT0}, s{sT0}, s{sT1}"); A(f"s_mul_i32 s{sT0}, s{sT0}, 896")
        A(f"v_lshl_add_u32 v8, {L}, 4, s{sT0}")
        for g in range(1, 4): A(f"v_add_u32 v{8+g}, {g*3584}, v8")
        for r in range(3): A(f"v_subrev_u32 v{12+r}, {(3-r)*896}, v8")
        A(f"v_lshlrev_b32 v15, 6, {L}")
        SHR, KR, VR, WW, KW, VT, AC = 16, 32, 108, 172, 204, 236, 240
        for m in range(4): A(f"buffer_load_dwordx4 {v(SHR+4*m,4)}, v15, {srd(rSH)}, 0 offen offset:{16*m}")
        for r in range(3): A(f"buffer_load_dwordx4 {v(KR+4*r,4)}, v{12+r}, {srd(rK)}, 0 offen")
        for t in range(16):
            A(f"buffer_load_dwordx4 {v(KR+4*(t+3),4)}, v{8+(t>>2)}, {srd(rK)}, 0 offen offset:{(t&3)*896}")
            A(f"buffer_load_dwordx4 {v(VR+4*t,4)}, v{8+(t>>2)}, {srd(rV)}, 0 offen offset:{(t&3)*896}")
        A(f"v_mov_b32 v2, {BIG}"); A(f"v_writelane_b32 v2, s{sT3}, 0"); A("v_mov_b32 v3, 1")
        A.wait(vm=clr); A(f"buffer_store_dword v3, v2, {srd(rDBG)}, 0 offen sc1")
        A(f"s_sub_u32 s{sT0}, 3, s{sW}"); A(f"s_lshl_b32 s{sT0}, s{sT0}, 1"); A(f"v_and_b32 v4, 7, {L}"); A(f"v_xor_b32 v5, s{sT0}, v4")
        A("v_lshlrev_b32 v5, 4, v5"); A(f"v_lshl_add_u32 v5, {L}, 10, v5"); A("v_xor_b32 v6, 16, v5")
        for d in range(8):
            for pr_ in range(2):
                src = SHR + 2 * d + pr_
                A(f"v_lshlrev_b32 v{WW+8*(2*pr_)+d}, 16, v{src}"); A(f"v_and_b32 v{WW+8*(2*pr_+1)+d}, 0xffff0000, v{src}")
        def unpk(r):
            for e in range(4):
                A(f"v_lshlrev_b32 v{KW+8*(r&3)+2*e}, 16, v{KR+4*r+e}"); A(f"v_and_b32 v{KW+8*(r&3)+2*e+1}, 0xffff0000, v{KR+4*r+e}")
        for r in range(3): unpk(r)
        O = SHR
        for t in range(16):
            unpk(t + 3)
            ac = AC + 8 * (t & 1)
            for i in range(4):
                for e in range(4):
                    kw = v(KW + 8 * ((t + 3 - i) & 3) + 2 * e, 2); ww = v(WW + 8 * i + 2 * e, 2)
                    if i == 0: A(f"v_pk_mul_f32 {v(ac+2*e,2)}, {kw}, {ww}")
                    else: A(f"v_pk_fma_f32 {v(ac+2*e,2)}, {kw}, {ww}, {v(ac+2*e,2)}")
            for e in range(4):
                vt = VT + 2 * (e & 1)
                A(f"v_lshlrev_b32 v{vt}, 16, v{VR+4*t+e}"); A(f"v_and_b32 v{vt+1}, 0xffff0000, v{VR+4*t+e}")
                A(f"v_pk_mul_f32 {v(ac+2*e,2)}, {v(ac+2*e,2)}, {v(vt,2)}")
            if t & 1:
                dw = 3 - ((t & 7) >> 1)
                for d in range(8): A(f"v_cvt_pk_bf16_f32 v{O+4*d+dw}, v{AC+8+d}, v{AC+d}")
            if (t & 7) == 7:
                for d in range(8): A(f"ds_write_b128 v{6 if t < 8 else 5}, {v(O+4*d,4)} offset:{d*128}")
        ld, chk = self.poll_items(f"buffer_load_dword v9, off, {srd(rDBG)}, 0 sc1", 9, 1, 1)
        A.add(ld)
        A(f"v_lshrrev_b32 v10, 3, {L}"); A("v_lshlrev_b32 v11, 12, v10"); A("v_lshl_add_u32 v11, v4, 4, v11")
        A(f"s_mul_i32 s{sT0}, s{sW}, 14")
        A(f"s_lshl_b32 s{sT1}, s{sHW}, 7"); A(f"s_sub_u32 s{sT1}, {WS_KVR+3968}, s{sT1}"); A(f"s_lshl_b32 s{sT2}, s{sT0}, 15"); A(f"s_add_u32 s{sT1}, s{sT1}, s{sT2}")
        A(f"s_lshl_b32 s{sT2}, s{sT0}, 10"); A(f"v_lshl_add_u32 v10, v10, 7, s{sT2}")
        A.wait(alllgkm=True); A("s_barrier")
        for m in range(14):
            A(f"s_add_u32 s{sT2}, s{sT0}, {m}"); A(f"s_and_b32 s{sT2}, s{sT2}, 7"); A(f"v_xor_b32 v12, s{sT2}, v4"); A("v_lshl_add_u32 v12, v12, 4, v10")
            A(f"ds_read_b128 {v(32+4*m,4)}, v12 offset:{m*1024}")
        sts = []
        for m in range(14):
            sts.append(A(f"buffer_store_dwordx4 {v(32+4*m,4)}, v11, {srd(rWS)}, s{sT1} offen sc1"))
            A(f"s_add_u32 s{sT1}, s{sT1}, 32768")
        for it in chk: A.add(it)
        A(f"s_lshl_b32 s{sT0}, s{sHW}, 4"); A(f"s_lshl_b32 s{sT1}, s{sW}, 2"); A(f"s_add_u32 s{sT0}, s{sT0}, s{sT1}"); A(f"s_add_u32 s{sT0}, s{sT0}, {WS_FL+FL_A}")
        A(f"v_mov_b32 v2, {BIG}"); A(f"v_writelane_b32 v2, s{sT0}, 0")
        A.wait(vm=sts); A(f"buffer_store_dword v3, v2, {srd(rWS)}, 0 offen sc1")
        if o.ts:
            A("s_memrealtime s[62:63]"); A("s_waitcnt lgkmcnt(0)"); A("v_mov_b32 v4, s62"); A("v_writelane_b32 v4, s30, 0"); A(f"v_lshlrev_b32 v2, 2, v0"); A(f"s_lshl_b32 s{sT0}, s2, 10"); A(f"s_add_u32 s{sT0}, s{sT0}, {WS_TS}")
            A(f"buffer_store_dword v4, v2, {srd(rWS)}, s{sT0} offen")
        A("s_endpgm")
        return A

    def build(self):
        A = self.entry()
        self.main(A)
        t_main = A.finalize(); H = self.helper(); t_help = H.finalize()
        sys.stderr.write(f"main: {A.stats}  helper: {H.stats}\n")
        head = open(self.opt.ref).read().split("; Override launch")[0]
        txt = head + f"; @launch grid=(256,1,1) block=(256,1,1) lds={LDS_BYTES}\n"
        txt += f'.amdgcn_target "amdgcn-amd-amdhsa--gfx950"\n.text\n.globl {NAME}_kernel\n.p2align 8\n.type {NAME}_kernel,@function\n{NAME}_kernel:\n'
        txt += t_main + "\n" + t_help + "\n" + "\n".join(self.slow) + "\nL_exit:\n    s_endpgm\n"
        txt += f""".section .rodata,"a"
.p2align 6
.amdhsa_kernel {NAME}_kernel
  .amdhsa_next_free_vgpr 512
  .amdhsa_next_free_sgpr 102
  .amdhsa_accum_offset 256
  .amdhsa_group_segment_fixed_size 0
  .amdhsa_kernarg_size 104
  .amdhsa_user_sgpr_count 2
  .amdhsa_user_sgpr_kernarg_segment_ptr 1
  .amdhsa_system_sgpr_workgroup_id_x 1
  .amdhsa_float_denorm_mode_32 3
.end_amdhsa_kernel
"""
        if self.opt.ts: txt = txt.replace("; @launch", "; stamps: " + ",".join(self.tsnames) + "\n; @launch", 1)
        return txt

if __name__ == "__main__":
    p = argparse.ArgumentParser()
    p.add_argument("-o", default=f"cdna_kernels/{NAME}.s")
    p.add_argument("--ref", default=f"cdna_kernels/{NAME}.s.ref")
    p.add_argument("--ts", default="")
    p.add_argument("--norot", action="store_true")
    p.add_argument("--nopf", action="store_true")
    o = p.parse_args()
    open(o.o, "w").write(Gen(o).build())
```

```python
import sys, argparse
from asmfw import Asm, Ins, Wait, Raw

NAME = "recurrent_scan__ssm_conv_h3__glu_gated_geglu__prompt"
S, D, F = 2048, 448, 1792
WS_H, WS_KVR, WS_YT, WS_ST, WS_FL, WS_TS = 0, 8 << 20, 10 << 20, 12 << 20, 13 << 20, 14 << 20
WS_SIZE = 15 << 20
FL_B, FL_C, FL_A = 0, 4096, 4096 + 7 * 512
BIG = 0x7f000000
SLOT = 16384
CB = 5 * SLOT
KCH, KCP = 16640, 4160
RB, RCH = CB + 33280, 4608
XS1 = CB
XS2 = CB + 43008
BSLOT = [6, 7, 0, 1, 2, 3, 4]
DSA = [8, 9, 6, 7, 5, 0, 1]
DSB = [8, 9, 2, 3, 4, 0, 1]
LDS_BYTES = 163840
sX, sK, sV, sSH, sKF, sD, sWG, sWU, sWD, sOUT, sDBG, sWS = 4, 6, 8, 10, 12, 14, 18, 20, 22, 24, 26, 28
rX, rW, rWD, rWS, rKF, rOUT, rDBG = 32, 36, 40, 44, 48, 52, 56
sXO, sWO, sDO, sHO = 60, 67, 74, 81
sW, sLW, sRT, sFT, sRHO, sI, sJ, sT0, sT1, sT2, sT3 = 88, 89, 90, 91, 92, 93, 94, 95, 96, 97, 98
sM1, sM2, sMH = 16, 30, 0
sDV, sCNT = 99, 100
sHS = [6, 7, 8, 9]
sR64, sDT, sYO = 10, 11, 101
def srd(r): return f"s[{r}:{r+3}]"
def v(a, n=1): return f"v{a}" if n == 1 else f"v[{a}:{a+n-1}]"
def a_(a, n=1): return f"a{a}" if n == 1 else f"a[{a}:{a+n-1}]"
def sp(a): return f"s[{a}:{a+1}]"
vL = 1
vXD, vWD_, vDD = 2, 6, 10
def vXR(st, b, s): return 68 + st * 8 + b * 4 + s
def vWR(st, al): return 30 + st * 2 + al
def vDR(st, dh): return 34 + st * 2 + dh
vH = [40, 41, 42, 43]
vA0, vA1, vIR = 44, 46, 48
vFLG = 50
vTMP = 51
vAC = [52, 56]; vBC = [60, 64]
vT, vN = 68, 72
vO = [76, 80]
vSEL = 92; vSUM, vSQ, vSA, vSB0, vSQ2 = 96, 100, 104, 108, 88
def vWF(buf, al): return 112 + buf * 8 + al * 4
def vACC(g, al, be): return 128 + g * 64 + (2 * al + be) * 16
def aXF(s, st, be): return s * 32 + (st * 2 + be) * 4
def aWD(s, sg, dh): return s * 32 + (sg * 2 + dh) * 4
def aHA(s, sg, tg): return s * 32 + 16 + (sg * 2 + tg) * 4
HB_REGS = [v(44 + 4 * i, 4) for i in range(17)] + [a_(224 + 4 * i, 4) for i in range(8)] + [v(240 + 4 * i, 4) for i in range(3)]
def rHB(s, sg, tg): return HB_REGS[(s * 2 + sg) * 2 + tg]

C0 = -2.0 * 0.7978845608028654 * 1.4426950408889634
C1 = C0 * 0.044715
import struct
def fl(x): return "0x%08x" % struct.unpack("<I", struct.pack("<f", x))[0]

MF32 = "v_mfma_f32_32x32x16_bf16"
MF16 = "v_mfma_f32_16x16x32_bf16"
MF4 = "v_mfma_f32_4x4x4_16b_bf16"

def cost(it):
    if isinstance(it, str): it = Ins(it)
    if not isinstance(it, Ins): return 0
    return 8 if it.kind == 'trans' else 4

class Call:
    def __init__(self, fn): self.fn = fn

class Skip:
    def __init__(self, n): self.n = n

class Fill:
    def __init__(self): self.q = []
    def add(self, *its):
        r = None
        for it in its:
            if isinstance(it, str): it = Ins(it)
            self.q.append(it); r = it
        return r
    def take(self, A, budget):
        while self.q:
            if isinstance(self.q[0], Skip):
                if budget < (1 << 20) and self.q[0].n > 0: self.q[0].n -= 1; break
                self.q.pop(0); continue
            c = cost(self.q[0])
            if c > budget and c > 0: break
            it = self.q.pop(0); budget -= c
            if isinstance(it, Call): it.fn()
            else: A.add(it)
            if isinstance(it, Ins) and it.op.startswith(('s_cmp', 's_bitcmp')):
                assert self.q[0].op.startswith('s_cselect')
                while self.q and isinstance(self.q[0], Ins) and self.q[0].op.startswith('s_cselect'):
                    A.add(self.q.pop(0)); budget -= 4
            if isinstance(it, Ins) and it.op.startswith('v_cmp') and self.q and isinstance(self.q[0], Ins) and self.q[0].op.startswith(('s_cbranch', 's_nop')):
                A.add(self.q.pop(0)); budget -= 4
        return budget
    def flush(self, A):
        while self.q: self.take(A, 1 << 20)

class VQ:
    def __init__(self): self.q = []
    def add(self, its):
        its = [Ins(i) if isinstance(i, str) else i for i in its]
        g = []
        for it in its:
            g.append(it)
            if isinstance(it, Ins) and it.kind == 'vmem': self.q.append(g); g = []
        if g: self.q.append(g)
        return its[-1]
    def take(self, A):
        if not self.q: return 0
        g = self.q.pop(0)
        for it in g: A.add(it)
        return sum(cost(i) for i in g)
    def flush(self, A):
        while self.q: self.take(A)

class Gen:
    def __init__(self, opt):
        self.opt = opt; self.slow = []; self.nslow = 0; self.nts = 0
    def mksrd(self, A, r, p, size):
        A(f"s_mov_b32 s{r}, s{p}"); A(f"s_mov_b32 s{r+1}, s{p+1}"); A(f"s_mov_b32 s{r+2}, {size}"); A(f"s_mov_b32 s{r+3}, 0x20000")
    def stamp(self, A, name):
        if not self.opt.ts: return
        sel = self.opt.ts.split(',')
        if not (name in sel or ('all' in sel and '.' not in name) or name.split('.')[0] + '.*' in sel): return
        k = self.nts; self.nts += 1
        self.tsnames.append(name)
        A(f"{self.opt.clk} s[18:19]"); A("s_waitcnt lgkmcnt(0)")
        A(f"v_writelane_b32 v0, s18, {k+1}")
    def poll_items(self, load_text, dst, n, level, alt_reg=None):
        k = self.nslow; self.nslow += 1
        ld = Ins(load_text)
        chk = []; assert n == 1
        chk += [Ins(f"v_cmp_gt_u32 vcc, {level}, v{dst}"), Ins(f"s_cbranch_vccnz L_slow{k}") if not self.opt.nopoll else Ins("s_nop 0"), Raw(f"L_back{k}:")]
        sl = [f"L_slow{k}:", f"    s_mov_b32 s{sCNT}, 0x20000", f"L_slowl{k}:", "    " + load_text, "    s_waitcnt vmcnt(0)",
              f"    v_cmp_gt_u32 vcc, {level}, v{dst}", "    s_nop 4", f"    s_cbranch_vccz L_back{k}",
              f"    s_sub_u32 s{sCNT}, s{sCNT}, 1", f"    s_cmp_lg_u32 s{sCNT}, 0", f"    s_cbranch_scc1 L_slowl{k}", f"    s_branch L_back{k}"]
        self.slow += sl
        return ld, chk

    def tag_check(self, loads, regs, tmp):
        k = self.nslow; self.nslow += 1
        body = []; src = []
        for i, r in enumerate(regs):
            if r[0] == 'a': body.append(f"v_accvgpr_read_b32 v{tmp+i}, {r}"); src.append(f"v{tmp+i}")
            else: src.append(r)
        if len(src) == 4: body += [f"v_max3_u32 v{tmp}, {src[0]}, {src[1]}, {src[2]}", f"v_max_u32 v{tmp}, v{tmp}, {src[3]}"]
        else: body += [f"v_max_u32 v{tmp}, {src[0]}, {src[1]}"]
        body.append(f"v_cmp_eq_u32 vcc, -1, v{tmp}")
        def issued(): assert all(any(isinstance(x, Ins) and x.text == t for x in self.A.items) for t in loads), "check before its loads"
        chk = [Call(issued)] + [Ins(t) for t in body] + [Ins(f"s_cbranch_vccnz L_slow{k}") if not self.opt.nopoll else Ins("s_nop 0"), Raw(f"L_back{k}:")]
        self.slow += [f"L_slow{k}:", f"    s_mov_b32 s{sCNT}, 0x20000", f"L_slowl{k}:"] + ["    " + t for t in loads] + ["    s_waitcnt vmcnt(0)"] + ["    " + t for t in body]
        self.slow += ["    s_nop 4", f"    s_cbranch_vccz L_back{k}", f"    s_sub_u32 s{sCNT}, s{sCNT}, 1", f"    s_cmp_lg_u32 s{sCNT}, 0", f"    s_cbranch_scc1 L_slowl{k}", f"    s_branch L_back{k}"]
        return chk

    def entry(self):
        A = Asm()
        if self.opt.ts: A(f"{self.opt.clk} s[30:31]")
        A("s_cmp_ge_u32 s2, 256"); A("s_cbranch_scc1 L_exit")
        A("s_load_dwordx16 s[4:19], s[0:1], 0"); A("s_load_dwordx8 s[20:27], s[0:1], 64"); A("s_load_dwordx2 s[28:29], s[0:1], 96")
        A(f"v_and_b32 v{vL}, 63, v0"); A("v_lshrrev_b32 v2, 6, v0"); A(f"v_readfirstlane_b32 s{sW}, v2")
        A("s_cmp_ge_u32 s2, 224"); A("s_cbranch_scc1 L_helper")
        return A

    def main(self, A):
        o = self.opt
        L = f"v{vL}"
        self.tsnames = []; self.A = A
        sTH, sFH = sT2, sT3
        A(f"s_and_b32 s{sT0}, s2, 7"); A(f"s_lshr_b32 s{sT1}, s2, 3")
        A(f"s_and_b32 s{sI}, s{sT1}, 3"); A(f"s_lshr_b32 s{sJ}, s{sT1}, 2")
        A(f"s_lshr_b32 s{sRT}, s{sT0}, 1"); A(f"s_lshl2_add_u32 s{sRT}, s{sRT}, s{sI}")
        A(f"s_and_b32 s{sFT}, s{sT0}, 1"); A(f"s_mul_i32 s{sFT}, s{sFT}, 7"); A(f"s_add_u32 s{sFT}, s{sFT}, s{sJ}")
        A(f"s_lshl1_add_u32 s{sRHO}, s{sI}, s{sJ}")
        A(f"s_sub_u32 s{sT1}, s{sRHO}, 7"); A(f"s_cselect_b32 s{sRHO}, s{sRHO}, s{sT1}")
        if o.norot: A(f"s_mov_b32 s{sRHO}, 0")
        def kappa(s):
            r = []
            if s: r += [f"s_add_u32 s{sRHO}, s{sRHO}, 1", f"s_cmp_eq_u32 s{sRHO}, 7", f"s_cselect_b32 s{sRHO}, 0, s{sRHO}"]
            return r + [f"s_lshl_b32 s{sXO+s}, s{sRHO}, 7", f"s_mul_i32 s{sWO+s}, s{sRHO}, {64*3584}"]
        for t in kappa(0): A(t)
        A(f"s_lshl_b32 s{sLW}, s{sW}, 12")
        A(f"v_lshrrev_b32 v44, 3, {L}"); A(f"v_and_b32 v45, 7, {L}"); A(f"v_lshrrev_b32 v46, 4, {L}")
        A(f"s_lshl2_add_u32 s{sT1}, s{sRT}, s{sW}"); A(f"s_mul_i32 s{sT1}, s{sT1}, {32*896}")
        A("v_mul_u32_u24 v47, 896, v44"); A(f"v_add_u32 v47, s{sT1}, v47")
        A("v_xor_b32 v48, v45, v46"); A(f"v_lshl_add_u32 v{vXD}, v48, 4, v47")
        A(f"v_add_u32 v{vXD+1}, 6144, v{vXD}"); A(f"v_xor_b32 v{vXD+1}, 64, v{vXD+1}")
        A(f"v_add_u32 v{vXD+2}, {2*6144}, v{vXD}"); A(f"v_add_u32 v{vXD+3}, {2*6144}, v{vXD+1}")
        A(f"s_and_b32 s{sTH}, s{sW}, 1"); A(f"s_mul_i32 s{sT1}, s{sTH}, {32*3584}"); A(f"s_lshl_b32 s{sT0}, s{sFT}, 8"); A(f"s_add_u32 s{sT1}, s{sT1}, s{sT0}")
        A("v_mul_u32_u24 v47, 3584, v44"); A(f"v_add_u32 v47, s{sT1}, v47")
        A(f"s_and_b32 s{sT0}, s{sW}, 2")
        A("v_and_b32 v48, 1, v46"); A(f"v_or_b32 v48, s{sT0}, v48"); A("v_lshlrev_b32 v48, 1, v48"); A("v_xor_b32 v48, v45, v48")
        A(f"v_lshl_add_u32 v{vWD_}, v48, 4, v47")
        for m in range(1, 4): A(f"v_add_u32 v{vWD_+m}, {m*27648}, v{vWD_}")
        A(f"s_mov_b32 s{rX+2}, {S*D*2}"); A(f"s_mov_b32 s{rX+3}, 0x20000"); A(f"s_mov_b32 s{rW+2}, {D*F*2}"); A(f"s_mov_b32 s{rW+3}, 0x20000")
        A(f"s_mov_b32 m0, s{sLW}"); A(f"s_cmp_ge_u32 s{sW}, 2")
        A(f"s_mov_b32 s{rX}, s{sX}"); A(f"s_mov_b32 s{rX+1}, s{sX+1}")
        A(f"s_cselect_b32 s{rW}, s{sWU}, s{sWG}"); A(f"s_cselect_b32 s{rW+1}, s{sWU+1}, s{sWG+1}")
        if o.ts: A("s_mov_b32 s3, s30")
        def m0set(base): return Ins(f"s_add_u32 m0, s{sLW}, {base}") if base else Ins(f"s_mov_b32 m0, s{sLW}")
        def dma_x(s): return [m0set(2 * (s & 3) * SLOT)] + [Ins(f"buffer_load_dwordx4 v{vXD+m}, {srd(rX)}, s{sXO+s} offen offset:{m*1024} lds") for m in range(4)]
        def dma_w(slot, s): return [m0set(slot * SLOT)] + [Ins(f"buffer_load_dwordx4 v{vWD_+m}, {srd(rW)}, s{sWO+s} offen offset:{m*1024} lds") for m in range(4)]
        def dma_d(slot, s): return [m0set(slot * SLOT)] + [Ins(f"buffer_load_dwordx4 v{vDD+m}, {srd(rWD)}, s{sDO+s} offen offset:{m*1024} lds") for m in range(4)]
        stA = {}
        self.stamp(A, "S.karg")
        for it in dma_x(0)[1:] + dma_w(1, 0): A.add(it)
        stA[0] = A.items[-1]
        self.stamp(A, "S.iss0")
        if o.probe0: A.wait(vm=[stA[0]]); self.stamp(A, "S.land0")
        Q = Fill()
        if not o.nopf:
            A(f"s_getpc_b64 {sp(sM1)}"); A.raw("L_pc:")
            A(f"v_lshlrev_b32 v47, 7, {L}"); A(f"s_lshl_b32 s{sT0}, s{sW}, 13"); A(f"v_add_u32 v47, s{sT0}, v47"); A("v_min_u32 v47, L_exit-L_pc, v47"); A(f"global_load_dword v255, v47, {sp(sM1)}")
        for t in kappa(1): A(t)
        for s in range(2, 7): Q.add(*kappa(s))
        Q.add(f"s_lshr_b32 s{sFH}, s{sW}, 1")
        Q.add(f"v_and_b32 v47, 31, {L}", f"v_lshrrev_b32 v48, 5, {L}", f"v_bfe_u32 v49, {L}, 1, 3", "v_xor_b32 v49, v49, v48", "v_lshlrev_b32 v49, 4, v49", "v_lshl_add_u32 v49, v47, 7, v49")
        Q.add(f"s_lshl1_add_u32 s{sT0}, s{sTH}, s{sFH}", f"s_lshl_b32 s{sT0}, s{sT0}, 12", f"v_add_u32 v{vXR(0,0,0)}, s{sT0}, v49")
        for s in range(1, 4): Q.add(f"v_xor_b32 v{vXR(0,0,s)}, {32*s}, v{vXR(0,0,0)}")
        for s in range(4): Q.add(f"v_xor_b32 v{vXR(0,1,s)}, 4096, v{vXR(0,0,s)}")
        for b in range(2):
            for s in range(4): Q.add(f"v_or_b32 v{vXR(1,b,s)}, 0x10000, v{vXR(0,b,s)}")
        Q.add(f"v_bfe_u32 v50, {L}, 2, 2", "v_lshl_add_u32 v51, v48, 3, v50", "v_lshlrev_b32 v51, 7, v51", f"v_bfe_u32 v52, {L}, 4, 1", f"v_and_b32 v53, 1, {L}",
              f"v_bfe_u32 v54, {L}, 1, 1", f"v_bfe_u32 v55, {L}, 3, 1")
        Q.add("v_lshl_add_u32 v56, v54, 13, v51", "v_lshl_add_u32 v56, v53, 4, v56", "v_lshl_add_u32 v56, v52, 3, v56", "v_lshl_add_u32 v57, v54, 1, v55",
              f"v_xor_b32 v57, s{sW}, v57", f"v_lshl_add_u32 v{vWR(0,0)}, v57, 5, v56", f"v_xor_b32 v{vWR(0,1)}, 32, v{vWR(0,0)}",
              f"v_or_b32 v{vWR(1,0)}, 0x10000, v{vWR(0,0)}", f"v_or_b32 v{vWR(1,1)}, 0x10000, v{vWR(0,1)}")
        Q.add(f"v_and_b32 v57, 7, {L}", "v_lshlrev_b32 v58, 2, v52", "v_cmp_eq_u32 vcc, v57, v58", "v_mov_b32 v57, 0x3f803f80")
        for e in range(4): Q.add(f"v_cndmask_b32 v{vSEL+e}, 0, v57, vcc")
        Q.add(f"s_lshl_b32 s{sT0}, s2, 2", f"s_load_dword s{sDV}, {sp(sD)}, s{sT0}")
        V = VQ()
        stA[1] = V.add(dma_x(1) + dma_w(3, 1))
        while V.q: V.take(A); Q.take(A, 4 * o.pre_gap)
        Q.flush(A)
        self.stamp(A, "S.q")
        stA[2] = V.add(dma_x(2) + dma_w(5, 2))
        for _ in range(o.pre2): V.take(A)
        stA[3] = V.add(dma_x(3) + dma_w(7, 3))
        A.wait(alllgkm=True)
        self.stamp(A, "setup")

        FQ = Fill(); VL = VQ()
        cvA, cvB, cD, vRW, vRZ, vFX, vFD, vKW, vX2, vX1o, vX1p, vST, vPD, vPB = 14, 15, 16, 20, 21, 22, 23, 24, 25, 26, 27, 28, 29, 5
        q = FQ
        q.add(f"s_and_b32 s{sT0}, s2, 7", f"s_lshl2_add_u32 s{sR64}, s{sT0}, s{sI}", f"s_mov_b32 s{sDT}, s{sJ}")
        for r, p_, sz in ((rWD, sWD, D * F * 2), (rWS, sWS, WS_SIZE), (rKF, sKF, D * S * 2), (rOUT, sOUT, S * D * 2), (rDBG, sDBG, 256)):
            q.add(f"s_mov_b32 s{r}, s{p_}", f"s_mov_b32 s{r+1}, s{p_+1}", f"s_mov_b32 s{r+2}, {sz}", f"s_mov_b32 s{r+3}, 0x20000")
        srd_done = q.add("s_nop 0")
        q.add("v_lshl_add_u32 v56, v53, 5, v51", "v_lshl_add_u32 v56, v52, 4, v56", "v_lshl_add_u32 v56, v54, 3, v56", f"v_add_u32 v56, s{sLW}, v56",
              f"v_lshl_add_u32 v{vDR(0,0)}, v55, 6, v56", f"v_xor_b32 v{vDR(0,1)}, 64, v{vDR(0,0)}")
        for dh in range(2): q.add(f"v_or_b32 v{vDR(1,dh)}, 0x10000, v{vDR(0,dh)}", f"v_or_b32 v{vDR(2,dh)}, 0x20000, v{vDR(0,dh)}")
        q.add("v_mul_u32_u24 v47, 896, v44", f"s_lshl_b32 s{sT0}, s{sDT}, 7", f"v_add_u32 v47, s{sT0}, v47", "v_xor_b32 v58, v45, v58", f"v_lshl_add_u32 v{vDD}, v58, 4, v47")
        for m in range(1, 4): q.add(f"v_add_u32 v{vDD+m}, {m*6144}, v{vDD}")
        q.add(f"s_mul_i32 s{sCNT}, s{sR64}, {2*112}", f"s_mul_i32 s{sRHO}, s{sW}, 14")
        for s in range(7):
            q.add(f"s_lshr_b32 s{sT0}, s{sXO+s}, 6", f"s_add_u32 s{sT0}, s{sT0}, s{sRHO}", f"s_add_u32 s{sHO+s}, s{sT0}, s{sCNT}", f"s_lshl_b32 s{sHO+s}, s{sHO+s}, 10",
                  f"s_and_b32 s{sT1}, s{sT0}, 0xfc", f"s_add_u32 s{sT0}, s{sT0}, s{sT1}", f"s_mul_i32 s{sDO+s}, s{sT0}, {16*896}")
        q.add(f"v_lshlrev_b32 v{vH[0]}, 4, {L}", f"v_add_u32 v{vH[1]}, {112*1024}, v{vH[0]}", f"v_add_u32 v{vH[2]}, {56*1024}, v{vH[0]}", f"v_add_u32 v{vH[3]}, {168*1024}, v{vH[0]}")
        q.add(f"s_lshl1_add_u32 s{sT0}, s{sTH}, s{sFH}", f"s_lshl2_add_u32 s{sT0}, s{sRT}, s{sT0}", f"s_xor_b32 s{sT1}, s{sT0}, 1",
              f"s_mul_i32 s{sT0}, s{sT0}, 112", f"s_mul_i32 s{sT1}, s{sT1}, 112", f"s_lshl2_add_u32 s{sCNT}, s{sFT}, s{sW}",
              f"s_add_u32 s{sHS[0]}, s{sT0}, s{sCNT}", f"s_add_u32 s{sHS[1]}, s{sT1}, s{sCNT}", f"s_xor_b32 s{sCNT}, s{sCNT}, 1",
              f"s_add_u32 s{sHS[2]}, s{sT0}, s{sCNT}", f"s_add_u32 s{sHS[3]}, s{sT1}, s{sCNT}")
        for k in range(4): q.add(f"s_lshl_b32 s{sHS[k]}, s{sHS[k]}, 10")
        q.add(f"s_mov_b32 s{sM1}, 0xaaaaaaaa", f"s_mov_b32 s{sM1+1}, 0xaaaaaaaa", f"s_mov_b32 s{sM2}, 0xcccccccc", f"s_mov_b32 s{sM2+1}, 0xcccccccc", f"s_mov_b32 s{sMH}, 0", f"s_mov_b32 s{sMH+1}, -1")
        q.add(f"s_lshl1_add_u32 s{sT0}, s{sRT}, s{sTH}", f"s_lshl_b32 s{sT0}, s{sT0}, 5", f"s_lshl1_add_u32 s{sT1}, s{sFT}, s{sFH}", f"s_add_u32 s{sT0}, s{sT0}, s{sT1}",
              f"s_lshl2_add_u32 s{sT0}, s{sT0}, {WS_FL}", f"v_mov_b32 v{vFLG}, {BIG}", f"v_writelane_b32 v{vFLG}, s{sT0}, 0",
              f"v_lshlrev_b32 v{vPD}, 2, {L}", f"v_cndmask_b32 v{vPD}, 0, v{vPD}, {sp(sMH)}",
              f"s_lshl1_add_u32 s{sT0}, s{sTH}, s{sFH}", f"s_lshl2_add_u32 s{sT0}, s{sRT}, s{sT0}", f"s_lshl_b32 s{sT0}, s{sT0}, 8", f"s_add_u32 s{sT0}, s{sT0}, {WS_ST}",
              f"s_cmp_eq_u32 s{sFT}, 0", f"s_cselect_b32 s{sT0}, s{sT0}, {BIG}", f"v_lshl_add_u32 v{vST}, {L}, 3, s{sT0}", f"v_mov_b32 v47, {BIG}",
              f"v_cndmask_b32 v{vST}, v{vST}, v47, {sp(sMH)}",
              f"s_lshl2_add_u32 s{sYO}, s2, s{sW}", f"s_lshl_b32 s{sYO}, s{sYO}, 11", f"s_add_u32 s{sYO}, s{sYO}, {WS_YT}")
        q.add(f"v_and_b32 v47, 15, {L}", "v_add_u32 v56, 1, v47", "v_and_b32 v57, 3, v56", f"v_mul_u32_u24 v57, {KCP}, v57", "v_and_b32 v56, 28, v56",
              "v_lshl_add_u32 v56, v46, 3, v56", f"v_lshl_add_u32 v{cvA}, v56, 1, v57",
              f"s_mul_i32 s{sT0}, s{sFH}, {KCH}", f"s_add_u32 s{sT0}, s{sT0}, {CB}", f"s_lshl_b32 s{sT1}, s{sTH}, 8", f"s_add_u32 s{sCNT}, s{sT0}, s{sT1}", f"v_add_u32 v{cvA}, s{sCNT}, v{cvA}",
              f"s_lshl3_add_u32 s{sT0}, s{sT1}, s{sT0}", f"s_add_u32 s{sT0}, s{sT0}, 32", f"v_add_u32 v{vKW}, s{sT0}, v{vH[0]}")
        q.add(f"s_mul_i32 s{sT0}, s{sFH}, {RCH}", f"s_add_u32 s{sT0}, s{sT0}, {RB}", f"v_lshl_add_u32 v{vRZ}, {L}, 3, s{sT0}",
              f"s_lshl3_add_u32 s{sCNT}, s{sT1}, s{sT0}", f"v_add_u32 v{vRW}, s{sCNT}, v{vH[0]}",
              f"s_add_u32 s{sT0}, s{sT0}, s{sT1}", f"s_add_u32 s{sT0}, s{sT0}, 480", "v_lshlrev_b32 v56, 4, v46", "v_lshlrev_b32 v57, 5, v47", "v_sub_u32 v56, v56, v57", f"v_add_u32 v{cvB}, s{sT0}, v56")
        q.add(f"s_lshl_b32 s{sT0}, s{sFH}, 4", f"s_lshr_b32 s{sDV}, s{sDV}, s{sT0}", f"s_and_b32 s{sDV}, s{sDV}, 0xffff", f"s_cmp_eq_u32 s{sTH}, 0", f"s_cselect_b32 s{sDV}, s{sDV}, 0",
              "v_lshl_add_u32 v56, v46, 3, v47", "v_sub_u32 v56, 15, v56", "v_and_b32 v57, 1, v56", "v_lshlrev_b32 v57, 4, v57", f"v_lshlrev_b32 v57, v57, s{sDV}", "v_ashrrev_i32 v56, 1, v56")
        for e in range(4): q.add(f"v_cmp_eq_u32 vcc, {e}, v56", "s_nop 1", f"v_cndmask_b32 v{cD+e}, 0, v57, vcc")
        q.add(f"v_bfe_u32 v47, {L}, 3, 2", "v_lshl_add_u32 v56, v45, 1, v47", "v_subrev_u32 v56, 16, v56", f"s_lshl_b32 s{sT0}, s2, 13", "v_lshlrev_b32 v57, 12, v48",
              f"v_add_u32 v57, s{sT0}, v57", f"v_mov_b32 v58, {BIG}", "v_lshl_add_u32 v57, v56, 1, v57", "v_cmp_gt_i32 vcc, 0, v56", "v_add_u32 v59, 2, v57",
              f"v_mul_u32_u24 v47, {KCP}, v47", "v_cndmask_b32 v57, v57, v58, vcc", "v_cmp_gt_i32 vcc, -1, v56", f"v_mul_u32_u24 v{vFX}, {KCH}, v48", "v_lshl_add_u32 v47, v45, 2, v47",
              "v_cndmask_b32 v59, v59, v58, vcc", f"v_add_u32 v{vFX}, v{vFX}, v47", f"v_add_u32 v{vFX}, {CB}, v{vFX}",
              f"buffer_load_ushort v{vFD}, v57, {srd(rKF)}, 0 offen", f"buffer_load_ushort v84, v59, {srd(rKF)}, 0 offen")
        q.add(f"v_lshlrev_b32 v47, 3, {L}", f"s_lshl_b32 s{sT0}, s{sW}, 9", f"v_add_u32 v47, s{sT0}, v47", f"v_add_u32 v{vX1o}, {XS1}, v47", f"v_add_u32 v{vX2}, {XS2}, v47")
        for r in (vAC[0], vAC[1], vBC[0], vBC[1]): q.add(f"v_mov_b32 v{r+2}, 0", f"v_mov_b32 v{r+3}, 0")

        def xread(s, st, b):
            base = 2 * (s & 3) * SLOT
            return Ins(f"ds_read_b128 {a_(aXF(s,st,b),4)}, v{vXR(base>>16,b,st)} offset:{base & 0xffff}")
        def wread(slot, st, al, buf):
            base = slot * SLOT + st * 2048
            return [Ins(f"ds_read_b64_tr_b16 {v(vWF(buf,al)+2*e,2)}, v{vWR(base>>16,al)} offset:{(base & 0xffff) + e*512}") for e in range(2)]
        A.wait(vm=[stA[0]]); A("s_barrier")
        self.stamp(A, "a0")
        for it in [xread(0, 0, 0)] + wread(1, 0, 0, 0) + [xread(0, 0, 1)] + wread(1, 0, 1, 0): A.add(it)
        stB = {}; stD = {}; stE = {}
        def vtake():
            if VL.q and len(VL.q[0]) == 1 and isinstance(VL.q[0][0], Ins) and VL.q[0][0].is_dma: return VL.take(A)
            return V.take(A) or VL.take(A)
        kstep = 0
        for c in range(7):
            for st in range(4):
                buf = kstep & 1; nb = buf ^ 1
                first = (kstep == 0)
                def M(al, b):
                    acc = v(vACC(0, al, b), 16)
                    return f"{MF32} {acc}, {v(vWF(buf,al),4)}, {a_(aXF(c,st,b),4)}, {'0' if first else acc}"
                if st < 3: nx = [xread(c, st + 1, 0), xread(c, st + 1, 1)]; sl, ns = 2 * (c & 3) + 1, st + 1
                elif c < 6: nx = [xread(c + 1, 0, 0), xread(c + 1, 0, 1)]; sl, ns = 2 * ((c + 1) & 3) + 1, 0
                else: nx = []; sl, ns = BSLOT[0], 0
                nw0 = wread(sl, ns, 0, nb); nw1 = wread(sl, ns, 1, nb)
                if st == 0 and c > 0: self.stamp(A, f"A.{c}")
                if not first: A.wait(alllgkm=True)
                A(M(0, 0))
                if st == 3:
                    A.wait(vm=[stA[c + 1] if c < 6 else stB[0]]); A("s_barrier")
                    if c < 3: stA[c + 4] = V.add(dma_x(c + 4) + dma_w(2 * (c & 3) + 1, c + 4))
                    else:
                        for b_ in ([0, 1], [2, 3], [4, 5], [6])[c - 3]:
                            stB[b_] = V.add([f"s_add_u32 s{sWO+b_}, s{sWO+b_}, 128"] + dma_w(BSLOT[b_], b_))
                        if c == 6:
                            FQ.flush(A)
                            for s in range(2): stD[s] = V.add(dma_d(DSA[s], s))
                for it in nx[:1] + nw0: A.add(it)
                FQ.take(A, 24 - 4 * (len(nx[:1]) + 2) - V.take(A))
                A(M(0, 1))
                for it in nx[1:] + nw1: A.add(it)
                FQ.take(A, 24 - 4 * (len(nx[1:]) + 2))
                A(M(1, 0)); FQ.take(A, 24 - V.take(A))
                A(M(1, 1)); FQ.take(A, 24)
                x0 = aXF(c, st, 0); w0 = vWF(buf, 0)
                A(f"{MF4} {v(vSQ,4)}, {a_(x0,2)}, {a_(x0,2)}, {'0' if first else v(vSQ,4)}")
                A(f"{MF4} {v(vSQ2,4)}, {a_(x0+2,2)}, {a_(x0+2,2)}, {'0' if first else v(vSQ2,4)}")
                A(f"{MF16} {v(vSUM,4)}, {v(vSEL,4)}, {a_(x0,4)}, {'0' if first else v(vSUM,4)}")
                if len(V.q) > o.v3: V.take(A)
                A(f"{MF16} {v(vSA,4)}, {v(vSEL,4)}, {v(w0,4)}, {'0' if first else v(vSA,4)}")
                kstep += 1
        self.stamp(A, "aend")

        VL.flush(A)
        def row_consts(q, b, d):
            q.add(f"v_rcp_f32 v{vTMP}, v{d}", f"v_mul_f32 v{vIR+b}, v{d}, v{d}", f"v_mul_f32 v{vA0+b}, {fl(C0)}, v{vTMP}",
                  f"v_mul_f32 v{vA1+b}, v{vTMP}, v{vTMP}", f"v_mul_f32 v{vA1+b}, v{vA1+b}, v{vTMP}", f"v_mul_f32 v{vA1+b}, {fl(C1)}, v{vA1+b}")
        def split3(q, src, dst, t):
            q.add(f"v_cndmask_b32 v{src}, v{src}, 0, {sp(sMH)}",
                  f"v_cvt_pk_bf16_f32 v{t}, v{src}, v{src}", f"v_and_b32 v{t+1}, 0xffff0000, v{t}", f"v_sub_f32 v{src}, v{src}, v{t+1}",
                  f"v_cvt_pk_bf16_f32 v{t+2}, v{src}, v{src}", f"v_and_b32 v{t+1}, 0xffff0000, v{t+2}", f"v_sub_f32 v{src}, v{src}, v{t+1}",
                  f"v_and_b32 v{t}, 0xffff, v{t}", f"v_or_b32 v{dst}, v{t}, v{t+1}", f"v_cvt_pk_bf16_f32 v{dst+1}, v{src}, 0")
        q = FQ; T = 68
        q.add(f"v_lshl_or_b32 v{vFD}, v84, 16, v{vFD}")
        for e in range(4): q.add(f"v_add_f32 v{vSQ+e}, v{vSQ+e}, v{vSQ2+e}")
        q.add(f"v_cndmask_b32 v{T}, v{vSQ}, v{vSQ+1}, {sp(sM1)}", f"v_cndmask_b32 v{T+1}, v{vSQ+2}, v{vSQ+3}, {sp(sM1)}", f"v_cndmask_b32 v{T}, v{T}, v{T+1}, {sp(sM2)}",
              f"v_mul_f32 v{T+2}, {fl(-1.0/D)}, v{vSUM}", f"v_mov_b32 v{T+1}, v{T}", f"v_cvt_pk_bf16_f32 v{vBC[0]}, v{T+2}, v{T+2}", f"v_mul_f32 v{T+2}, v{T+2}, v{T+2}",
              f"v_permlane32_swap_b32 v{T}, v{T+1}", f"v_add_f32 v{T}, v{T}, v{T+1}", f"v_mov_b32 v{vBC[0]+1}, v{vBC[0]}", f"v_mov_b32 v84, v{vBC[0]}",
              f"v_mul_f32 v{T}, {fl(1.0/D)}, v{T}", f"v_sub_f32 v{T}, v{T}, v{T+2}", f"v_max_f32 v{T}, 0, v{T}",
              f"v_cvt_pk_bf16_f32 v{T}, v{T}, v{T}", f"v_and_b32 v{T}, 0xffff0000, v{T}", f"v_add_f32 v{T}, {fl(1e-5)}, v{T}", f"v_cvt_pk_bf16_f32 v{T}, v{T}, v{T}",
              f"v_and_b32 v{T}, 0xffff0000, v{T}", f"v_sqrt_f32 v{T}, v{T}")
        split3(q, vSA, vAC[0], T + 4)
        q.add(f"v_cvt_pk_bf16_f32 v{T}, v{T}, v{T}", f"v_and_b32 v85, 0xffff0000, v{T}",
              f"ds_write_b64 v{vX1o}, v[84:85]", f"ds_write_b64 v{vX1o}, {v(vAC[0],2)} offset:2048")
        row_consts(q, 0, 85)
        q.add(f"v_and_b32 v{T}, 0xffff0000, v84", f"v_mov_b32 v{T+1}, v{vTMP}")
        st_stats = q.add(f"buffer_store_dwordx2 {v(T,2)}, v{vST}, {srd(rWS)}, 0 offen sc1")
        q.add(f"v_min_u32 v{vPB}, 27, {L}", f"s_lshl_b32 s{sT0}, s{sR64}, 7", f"s_add_u32 s{sT0}, s{sT0}, {WS_FL}", f"v_lshl_add_u32 v{vPB}, v{vPB}, 2, s{sT0}")
        q.add(f"v_xor_b32 v{vX1p}, 1024, v{vX1o}", f"v_xor_b32 v{vX1o}, 512, v{vX1o}")
        ld_arr, chk_arr = self.poll_items(f"buffer_load_dword v{vSUM}, v{vPD}, {srd(rDBG)}, 0 offen sc1", vSUM, 1, 1, vSUM + 1)

        def geglu(q, g, al, b, ob, pk=False):
            acc = vACC(g, al, b); out = vO[ob]
            def bc(r): return (v(r & ~1, 2), r & 1)
            for hf in range(2):
                G = acc + 8 * hf; U = G + 4
                if not pk:
                    for e in range(4): q.add(f"v_mul_f32 v{vT+e}, v{G+e}, v{G+e}")
                    for e in range(4): q.add(f"v_fma_f32 v{vT+e}, v{vT+e}, v{vA1+b}, v{vA0+b}")
                    for e in range(4): q.add(f"v_mul_f32 v{vT+e}, v{G+e}, v{vT+e}")
                    for e in range(4): q.add(f"v_exp_f32 v{vT+e}, v{vT+e}", f"v_mul_f32 v{vN+e}, v{G+e}, v{U+e}")
                    for e in range(4): q.add(f"v_fma_f32 v{vT+e}, v{vT+e}, v{vIR+b}, v{vIR+b}")
                    for e in range(4): q.add(f"v_rcp_f32 v{vT+e}, v{vT+e}")
                    for e in range(4): q.add(f"v_mul_f32 v{vN+e}, v{vN+e}, v{vT+e}")
                else:
                    sel3 = f"op_sel:[0,{b},{b}] op_sel_hi:[1,{b},{b}]"
                    for e in (0, 2): q.add(f"v_pk_mul_f32 {v(vT+e,2)}, {v(G+e,2)}, {v(G+e,2)}")
                    for e in (0, 2): q.add(f"v_pk_fma_f32 {v(vT+e,2)}, {v(vT+e,2)}, {v(vA1,2)}, {v(vA0,2)} {sel3}")
                    for e in (0, 2): q.add(f"v_pk_mul_f32 {v(vT+e,2)}, {v(G+e,2)}, {v(vT+e,2)}")
                    for e in (0, 2): q.add(f"v_pk_mul_f32 {v(vN+e,2)}, {v(G+e,2)}, {v(U+e,2)}")
                    for e in range(4): q.add(f"v_exp_f32 v{vT+e}, v{vT+e}")
                    for e in (0, 2): q.add(f"v_pk_fma_f32 {v(vT+e,2)}, {v(vT+e,2)}, {v(vIR,2)}, {v(vIR,2)} {sel3}")
                    for e in range(4): q.add(f"v_rcp_f32 v{vT+e}, v{vT+e}")
                    for e in (0, 2): q.add(f"v_pk_mul_f32 {v(vN+e,2)}, {v(vN+e,2)}, {v(vT+e,2)}")
                for e in range(2): q.add(f"v_cvt_pk_bf16_f32 v{out+2*hf+e}, v{vN+2*e}, v{vN+2*e+1}")
            return q.add(f"buffer_store_dwordx4 {v(out,4)}, v{vH[2*g]}, {srd(rWS)}, s{sHS[2*al+b]} offen sc1")
        def corr(g, al, b):
            acc = v(vACC(g, al, b), 16)
            return f"{MF32} {acc}, {v(vAC[al],4)}, {v(vBC[b],4)}, {acc}"
        def dread(slot, sg, dh, dst):
            base = slot * SLOT + sg * 2048
            f = a_ if dst[0] == 'a' else v
            return [Ins(f"ds_read_b64_tr_b16 {f(dst[1]+2*e,2)}, v{vDR(base>>16,dh)} offset:{(base & 0xffff) + e*512}") for e in range(2)]
        mvrd = {}
        def d_move(s):
            mvrd[s] = [it for sg in range(2) for dh in range(2) for it in dread(DSA[s], sg, dh, ('a', aWD(s, sg, dh)))]
            return [Wait(vm=[stD[s]])] + mvrd[s]
        def e_issue(vq, s, after_move):
            stE[s] = vq.add(([Wait(lgkm=mvrd[s])] if after_move else []) + [f"s_add_u32 s{sDO+s}, s{sDO+s}, {64*896}"] + dma_d(DSB[s], s))
        kA, kB, kC, kO = [128, 136], [132, 140], [144, 145], [148, 152]
        hstores = []
        MV = Fill()
        for c in range(7):
            for st in range(4):
                buf = kstep & 1; nb = buf ^ 1
                first = (c == 0 and st == 0); last = (c == 6 and st == 3)
                def M(al, b):
                    acc = v(vACC(1, al, b), 16)
                    return f"{MF32} {acc}, {v(vWF(buf,al),4)}, {a_(aXF(c,st,b),4)}, {'0' if first else acc}"
                if st < 3: nw = wread(BSLOT[c], st + 1, 0, nb) + wread(BSLOT[c], st + 1, 1, nb)
                elif c < 6: nw = wread(BSLOT[c + 1], 0, 0, nb) + wread(BSLOT[c + 1], 0, 1, nb)
                else: nw = []
                smf = f"{MF16} {v(vSB0,4)}, {v(vSEL,4)}, {v(vWF(buf,0),4)}, {'0' if first else v(vSB0,4)}"
                if st == 0 and c > 0: self.stamp(A, f"B.{c}")
                if st == 0 and c >= 1: MV.add(*d_move(c - 1))
                if st == 3:
                    MV.flush(A)
                    if c == 0 or c == 6: FQ.flush(A)
                    if c in (1, 2): e_issue(VL, c - 1, True)
                    if c == 6: e_issue(VL, 5, True)
                A.wait(alllgkm=True)
                if last: A(smf)
                if c == 1 and st == 1:
                    FQ.flush(A)
                    for al in range(2):
                        for b in range(2): A(corr(0, al, b)); vtake() if b else None
                    kf = [f"s_lshl2_add_u32 s{sRHO}, s2, s{sW}", f"s_lshl_b32 s{sRHO}, s{sRHO}, 11"]
                    for u in range(2):
                        kf += [f"buffer_load_dwordx4 {v(kA[u],4)}, v{vH[0]}, {srd(rKF)}, s{sRHO} offen offset:{u*1024}",
                               f"buffer_load_dwordx4 {v(kB[u],4)}, v{vH[0]}, {srd(rKF)}, s{sRHO} offen offset:{u*1024+4}",
                               f"buffer_load_dword v{kC[u]}, v{vH[0]}, {srd(rKF)}, s{sRHO} offen offset:{u*1024+20}"]
                    kf = [Ins(t) for t in kf]
                    for al in range(2):
                        for b in range(2):
                            hstores.append(geglu(FQ, 0, al, b, b))
                            if al == 0 and b == 1: FQ.add(Call(lambda: V.add(kf)))
                A(M(0, 0))
                if st == 3:
                    if c < 6: A.wait(vm=[stB[c + 1]])
                    A("s_barrier")
                    if c == 0:
                        A(f"ds_read_b64 v[84:85], v{vX1p}"); A(f"ds_read_b64 {v(vAC[1],2)}, v{vX1o} offset:2048")
                        FQ.add(f"v_mov_b32 v{vBC[1]}, v84", f"v_mov_b32 v{vBC[1]+1}, v84"); row_consts(FQ, 1, 85)
                    for s in {0: [2], 1: [3, 4], 2: [5], 3: [6]}.get(c, []): stD[s] = V.add(dma_d(DSA[s], s))
                    if c in (4, 5, 6): e_issue(VL, c - 2, False)
                    if c == 5:
                        FQ.add(Wait(vm=[kf[-1]]))
                        for u in range(2):
                            a0, b0, c0 = kA[u], kB[u], kC[u]
                            FQ.add(f"ds_write_b128 v{vKW}, {v(a0,4)} offset:{u*1024}", f"ds_write_b128 v{vKW}, {v(b0,4)} offset:{u*1024+2*KCP}")
                            for e, (hi, lo) in enumerate([(a0+1, a0), (a0+2, a0+1), (a0+3, a0+2), (b0+3, a0+3)]): FQ.add(f"v_alignbit_b32 v{kO[0]+e}, v{hi}, v{lo}, 16")
                            FQ.add(f"ds_write_b128 v{vKW}, {v(kO[0],4)} offset:{u*1024+KCP}")
                            for e, (hi, lo) in enumerate([(b0+1, b0), (b0+2, b0+1), (b0+3, b0+2), (c0, b0+3)]): FQ.add(f"v_alignbit_b32 v{kO[1]+e}, v{hi}, v{lo}, 16")
                            FQ.add(f"ds_write_b128 v{vKW}, {v(kO[1],4)} offset:{u*1024+3*KCP}")
                        FQ.add(f"ds_write_b32 v{vFX}, v{vFD}", "v_mov_b32 v84, 0", "v_mov_b32 v85, 0", f"ds_write_b64 v{vRZ}, v[84:85] offset:4096")
                    if c == o.pollarr: V.add([ld_arr])
                    if last:
                        split3(FQ, vSB0, vAC[0], T + 4); FQ.add(f"ds_write_b64 v{vX2}, {v(vAC[0],2)}", f"v_xor_b32 v{vX2}, 512, v{vX2}")
                for it in nw: A.add(it)
                FQ.take(A, 24 - 4 * len(nw))
                A(M(0, 1)); FQ.take(A, MV.take(A, 24 - vtake()) if st < 2 else 24 - vtake())
                A(M(1, 0)); FQ.take(A, MV.take(A, 8) + 16)
                A(M(1, 1)); FQ.take(A, 24 - vtake())
                if not last: A(smf); FQ.take(A, 8)
                kstep += 1
        FQ.flush(A)
        self.stamp(A, "bend")
        A.wait(alllgkm=True); A(corr(1, 0, 0)); A("s_barrier"); A(f"ds_read_b64 {v(vAC[1],2)}, v{vX2}"); A(corr(1, 0, 1))
        for it in d_move(6): A.add(it)
        e_issue(VL, 6, True)
        HA = {}; HB = {}
        for s_ in range(7):
            HA[s_] = [(a_(aHA(s_,sg,tg),4), f"buffer_load_dwordx4 {a_(aHA(s_,sg,tg),4)}, v{vH[tg]}, {srd(rWS)}, s{sHO+s_} offen offset:{sg*1024} sc1") for sg in range(2) for tg in range(2)]
            HB[s_] = [(rHB(s_,sg,tg), f"buffer_load_dwordx4 {rHB(s_,sg,tg)}, v{vH[2+tg]}, {srd(rWS)}, s{sHO+s_} offen offset:{sg*1024} sc1") for sg in range(2) for tg in range(2)]
        ldB1, chkB1 = self.poll_items(f"buffer_load_dword v2, v{vPB}, {srd(rWS)}, 0 offen sc1", 2, 1, 1, 3)
        ldB2, chkB2 = self.poll_items(f"buffer_load_dword v4, v{vPB}, {srd(rWS)}, 0 offen sc1", 4, 1, 2, 3)
        hst = []
        def run_geglu(al, b):
            g = Fill(); hst.append(geglu(g, 1, al, b, b, pk=o.pk))
            while g.q: g.take(A, 56); vtake()
        vtake(); vtake()
        self.stamp(A, "P.0")
        run_geglu(0, 0)
        self.stamp(A, "P.1")
        A(corr(1, 1, 0)); A(corr(1, 1, 1))
        for it in chk_arr: A.add(it)
        V.add([f"s_add_u32 s{sRHO}, s{sRHO}, {WS_KVR}"] + [f"buffer_load_dwordx4 {a_(224+4*u,4)}, v{vH[0]}, {srd(rWS)}, s{sRHO} offen offset:{u*1024} sc1" for u in range(2)])
        V.add([Wait(vm=hstores + [st_stats]), f"v_mov_b32 v{vTMP}, 1", f"buffer_store_dword v{vTMP}, v{vFLG}, {srd(rWS)}, 0 offen sc1"])
        run_geglu(0, 1)
        self.stamp(A, "P.2")
        run_geglu(1, 0); self.stamp(A, "P.4"); run_geglu(1, 1); self.stamp(A, "P.5")
        V.flush(A); VL.flush(A)
        for u in range(2): A(f"ds_write_b128 v{vRW}, {a_(224+4*u,4)} offset:{u*1024}")
        cACC, cA, cB = 128, 160, 192
        A.wait(alllgkm=True); A("s_barrier")
        self.stamp(A, "conv0")
        def cra(a, jj): return [Ins(f"ds_read_b64 {v(cA+4*a+2*e,2)}, v{cvA} offset:{512*a+64*jj+8*e}") for e in range(2)]
        def crb(c, jj): return [Ins(f"ds_read_b128 {v(cB+4*c,4)}, v{cvB} offset:{512*(7-c)+64*jj}")]
        rb = {}; ra = {}
        for c in range(7, -1, -1): rb[c] = A.add(crb(c, 0)[0])
        for a in range(8):
            for it in cra(a, 0): ra[a] = A.add(it)
        FQ = Fill()
        gap = 0
        for c in range(7, -1, -1):
            if c in (7, 3): A.wait(lgkm=[rb[c - 3]])
            A(f"{MF16} {v(cACC+4*c,4)}, {v(cD,4)}, {v(cB+4*c,4)}, 0")
        for jj in range(4):
            pos = 0
            self.stamp(A, f"C.{jj}")
            for a in range(8):
                for c in range(7 - a, -1, -1):
                    if jj == 0 and pos == 0: A.wait(lgkm=[ra[7]])
                    if jj > 0:
                        if pos == 0: A.wait(lgkm=[rb[3]])
                        if pos == 5: A.wait(lgkm=[rb[1]])
                        if pos == 7: A.wait(lgkm=[ra[7]])
                    gi = jj * 36 + pos
                    if gi == o.pollb1: V.add([ldB1])
                    if gi == o.chkb1: VL.add(list(chkB1) + [t for s_ in range(7) for _, t in HA[s_]])
                    if gi == o.sig2: V.add([Wait(vm=hst), f"v_mov_b32 v{vTMP}, 2", f"buffer_store_dword v{vTMP}, v{vFLG}, {srd(rWS)}, 0 offen sc1"])
                    if gi == o.pollb2: V.add([ldB2])
                    acc = v(cACC + 4 * (a + c), 4)
                    A(f"{MF16} {acc}, {v(cA+4*a,4)}, {v(cB+4*c,4)}, {acc}")
                    n = 0
                    if jj < 3:
                        if c == 7 - a: rb[c] = A.add(crb(c, jj + 1)[0]); n += 1
                        if c == 0:
                            for it in cra(a, jj + 1): ra[a] = A.add(it); n += 1
                    gap += 1
                    if gap >= o.cgap and n == 0:
                        if vtake(): gap = 0
                        else: FQ.take(A, 8)
                    elif n == 0: FQ.take(A, 8)
                    pos += 1
        FQ.flush(A)
        self.stamp(A, "conv1")
        def fACC(tg, dh): return 160 + (tg * 2 + dh) * 16
        cS, cR = 224, 6
        FQ = Fill()
        FQ.add(f"s_add_u32 s{sT0}, s{sLW}, {CB}", f"v_add_u32 v{cR}, s{sT0}, v{vH[0]}", f"v_xor_b32 v{cR+1}, 4096, v{cR}", f"s_cmp_eq_u32 s{sTH}, 1", f"s_cselect_b64 {sp(sM1)}, -1, 0", "s_barrier")
        for r in range(16):
            FQ.add(f"v_cndmask_b32 v{cS+r}, v{cACC+16+r}, v{cACC+r}, {sp(sM1)}", f"v_cndmask_b32 v{cACC+r}, v{cACC+r}, v{cACC+16+r}, {sp(sM1)}")
            if r % 4 == 3: FQ.add(f"ds_write_b128 v{cR}, {v(cS+r-3,4)} offset:{(r//4)*1024}")
        FQ.add(f"v_and_b32 v{cR+2}, 15, {L}", f"v_lshrrev_b32 v{cR+3}, 4, {L}", f"v_lshlrev_b32 v{cR+3}, 3, v{cR+3}", f"v_lshl_add_u32 v{cR+2}, v{cR+2}, 5, v{cR+3}",
               Skip(2), Wait(alllgkm=True), "s_barrier")
        for k in range(4): FQ.add(f"ds_read_b128 {v(cS+4*k,4)}, v{cR+1} offset:{k*1024}")
        FQ.add(Skip(3))
        yst = []
        for k in range(4):
            for r in range(4): FQ.add(f"v_add_f32 v{cACC+4*k+r}, v{cACC+4*k+r}, v{cS+4*k+r}")
            FQ.add(f"v_cvt_pk_bf16_f32 v{cACC+16+2*k}, v{cACC+4*k}, v{cACC+4*k+1}", f"v_cvt_pk_bf16_f32 v{cACC+16+2*k+1}, v{cACC+4*k+2}, v{cACC+4*k+3}")
            FQ.add(f"v_min_u32 v{cACC+16+2*k}, -2, v{cACC+16+2*k}")
            yst.append(FQ.add(f"buffer_store_dwordx2 {v(cACC+16+2*k,2)}, v{cR+2}, {srd(rWS)}, s{sYO} offen offset:{k*512} sc1"))
        eX, eST, eY, eP, eXF, eOF = 128, 136, 224, 140, 14, 30
        eR, eC, eA, eB = 232, 233, 234, 235
        EQ = Fill()
        EQ.add(f"v_lshrrev_b32 v{eR}, 3, {L}", f"v_and_b32 v{eC}, 7, {L}",
               f"s_lshl3_add_u32 s{sT0}, s{sR64}, s{sW}", f"s_lshl_b32 s{sT0}, s{sT0}, 3", f"v_add_u32 v{eA}, s{sT0}, v{eR}",
               f"v_mul_u32_u24 v{eOF}, 896, v{eA}", f"s_lshl_b32 s{sT1}, s{sDT}, 7", f"v_lshl_add_u32 v{eOF}, v{eC}, 4, v{eOF}", f"v_add_u32 v{eOF}, s{sT1}, v{eOF}",
               f"v_add_u32 v{eOF+1}, {32*896}, v{eOF}", f"v_lshlrev_b32 v{eA}, 3, v{eA}", f"v_add_u32 v{eA}, {WS_ST}, v{eA}")
        stl = [f"buffer_load_dwordx2 {v(eST+2*tg,2)}, v{eA}, {srd(rWS)}, 0 offen offset:{tg*256} sc1" for tg in range(2)]
        EQ.add(Call(lambda: V.add(stl + [f"buffer_load_dwordx4 {v(eX+4*tg,4)}, v{eOF+tg}, {srd(rX)}, 0 offen" for tg in range(2)])))
        EQ.add(f"s_lshl2_add_u32 s{sRHO}, s{sDT}, s{sW}", f"s_lshl_b32 s{sRHO}, s{sRHO}, 16", f"s_lshl_b32 s{sT1}, s{sR64}, 7", f"s_add_u32 s{sRHO}, s{sRHO}, s{sT1}", f"s_add_u32 s{sRHO}, s{sRHO}, {WS_YT}",
               f"v_lshlrev_b32 v{eB}, 12, v{eR}", f"v_lshl_add_u32 v{eB}, v{eC}, 4, v{eB}", f"v_add_u32 v{eB+1}, 32768, v{eB}")
        yl = [f"buffer_load_dwordx4 {v(eY+4*u,4)}, v{eB+u}, {srd(rWS)}, s{sRHO} offen sc1" for u in range(2)]
        EQ.add(f"v_and_b32 v10, 31, {L}", f"v_lshrrev_b32 v11, 5, {L}", "v_lshlrev_b32 v11, 2, v11", f"v_xor_b32 v11, v11, v{eC}", "v_lshlrev_b32 v11, 4, v11", "v_lshl_add_u32 v11, v10, 8, v11",
               f"s_lshl_b32 s{sT0}, s{sW}, 13", f"v_add_u32 v10, s{sT0}, v11")
        for j in range(1, 4): EQ.add(f"v_xor_b32 v{10+j}, {16*j}, v10")
        EQ.add(f"s_lshl_b32 s{sT0}, s{sW}, 11", f"v_lshlrev_b32 v32, 1, v{eC}", f"v_xor_b32 v32, v32, v{eR}", "v_lshlrev_b32 v32, 4, v32", f"v_lshl_add_u32 v32, v{eR}, 8, v32",
               f"v_add_u32 v32, s{sT0}, v32", "v_xor_b32 v33, 16, v32")
        def bfr(k): return 112 + 8 * (k & 1)
        steps = [(g, s, sg) for g in range(2) for s in range(7) for sg in range(2)]
        def bread(k):
            g, s, sg = steps[k]
            r = [Wait(vm=[stE[s]])] if sg == 0 else []
            return r + dread(DSB[s], sg, 0, ('v', bfr(k))) + dread(DSB[s], sg, 1, ('v', bfr(k) + 4))
        YB = CB + 32768
        for k, (g, s, sg) in enumerate(steps):
            if k and k % 2 == 0: self.stamp(A, f"F.{k}")
            if k == 0: FQ.q += EQ.q
            if k == o.yld: V.add(yl)
            if k == o.xpre:
                for tg in range(2):
                    for e in range(4):
                        FQ.add(f"v_lshlrev_b32 v{eXF+8*tg+2*e}, 16, v{eX+4*tg+e}", f"v_and_b32 v{eXF+8*tg+2*e+1}, 0xffff0000, v{eX+4*tg+e}")
                    for e in range(8): FQ.add(f"v_add_f32 v{eP+8*tg+e}, v{eXF+8*tg+e}, v{eST+2*tg}")
                    for e in range(8): FQ.add(f"v_mul_f32 v{eP+8*tg+e}, v{eP+8*tg+e}, v{eST+2*tg+1}")
                FQ.add(f"s_lshl_b32 s{sT0}, s{sW}, 1", f"v_xor_b32 v{eA}, s{sT0}, v{eC}", f"v_lshlrev_b32 v{eA}, 4, v{eA}", f"v_lshl_add_u32 v{eA}, v{eR}, 7, v{eA}",
                       f"s_lshl_b32 s{sT0}, s{sW}, 11", f"s_add_u32 s{sT0}, s{sT0}, {YB}", f"v_add_u32 v{eA}, s{sT0}, v{eA}", f"v_xor_b32 v237, 16, v{eA}")
                for e in range(8): FQ.add(f"v_mov_b32 v{eX+e}, 0")
                self.ywr = [Ins(f"ds_write_b128 v{eA}, {v(eY,4)}"), Ins(f"ds_write_b128 v237, {v(eY+4,4)} offset:1024")]
            if k == o.ybar:
                FQ.flush(A); V.flush(A)
                FQ.add(*self.tag_check(yl, [f"v{eY}", f"v{eY+4}"], 238)); FQ.add(*self.ywr)
                FQ.add(f"v_xor_b32 v{eA}, s{sW}, v{eC}", f"v_lshlrev_b32 v{eA}, 4, v{eA}", f"v_lshl_add_u32 v{eA}, v{eC}, 10, v{eA}", f"v_lshl_add_u32 v{eA}, v{eR}, 1, v{eA}",
                       f"v_add_u32 v{eA}, {YB}, v{eA}", f"v_xor_b32 v{eB}, 64, v{eA}")
                for e in range(8): FQ.add(f"v_mov_b32 v{eY+e}, 0")
                FQ.add(Skip(1), Wait(lgkm=self.ywr), "s_barrier")
                for e in range(8): FQ.add(f"ds_read_u16_d16_hi v{eX+e}, v{eA} offset:{e*128}")
                for e in range(8): FQ.add(f"ds_read_u16_d16_hi v{eY+e}, v{eB} offset:{e*128}")
            if k == 27:
                for e in range(8): FQ.add(f"v_mul_f32 v{eP+e}, v{eP+e}, v{eX+e}")
                for e in range(8): FQ.add(f"v_mul_f32 v{eP+8+e}, v{eP+8+e}, v{eY+e}")
            nxt = bread(k + 1) if (k + 1 < 28 and steps[k + 1][0] == 1) else []
            if k + 144 == o.pollb2: V.add([ldB2])
            if k == o.chkb2: VL.add(list(chkB2) + [t for s_ in range(7) for _, t in HB[s_]])
            if sg == 0:
                nit = (HA if g == 0 else HB)[s]
                while any(isinstance(x, Ins) and x.text == nit[-1][1] for g_ in VL.q for x in g_): vtake()
                assert any(isinstance(x, Ins) and x.text == nit[-1][1] for x in A.items)
            if g == 1: A.wait(lgkm=cur)
            cur = [it for it in nxt if isinstance(it, Ins)]
            for i_, (tg, dh) in enumerate([(0, 0), (1, 0), (0, 1), (1, 1)]):
                acc = v(fACC(tg, dh), 16)
                wa = a_(aWD(s, sg, dh), 4) if g == 0 else v(bfr(k) + 4 * dh, 4)
                hb = a_(aHA(s, sg, tg), 4) if g == 0 else rHB(s, sg, tg)
                A(f"{MF32} {acc}, {wa}, {hb}, {'0' if k == 0 else acc}")
                bud = 24
                if i_ == 0:
                    for it in nxt: A.add(it); bud -= cost(it)
                if i_ & 1: bud -= vtake()
                FQ.take(A, bud)
        FQ.flush(A)
        self.stamp(A, "f2end")
        A("s_barrier")
        for tg in range(2):
            for dh in range(2):
                for j in range(4): A(f"ds_write_b128 v{10+j}, {v(fACC(tg,dh)+4*j,4)} offset:{tg*32768+dh*128}")
        A.wait(alllgkm=True); A("s_barrier")
        pr = 44
        for tg in range(2):
            for ww in range(4):
                for j in range(2): A(f"ds_read_b128 {v(pr+tg*32+ww*8+4*j,4)}, v{32+j} offset:{tg*32768+ww*8192}")
        LOG2E = 1.4426950408889634
        for tg in range(2):
            b = pr + tg * 32
            for e in range(0, 8, 2): A(f"v_pk_add_f32 {v(b+e,2)}, {v(b+e,2)}, {v(b+8+e,2)}")
            for e in range(0, 8, 2): A(f"v_pk_add_f32 {v(b+16+e,2)}, {v(b+16+e,2)}, {v(b+24+e,2)}")
            for e in range(0, 8, 2): A(f"v_pk_add_f32 {v(b+e,2)}, {v(b+e,2)}, {v(b+16+e,2)}")
            for e in range(8): A(f"v_mul_f32 v{b+8+e}, {fl(-LOG2E)}, v{b+e}")
            for e in range(8): A(f"v_exp_f32 v{b+8+e}, v{b+8+e}")
            for e in range(0, 8, 2): A(f"v_pk_mul_f32 {v(b+e,2)}, {v(b+e,2)}, {v(eP+8*tg+e,2)}")
            for e in range(0, 8, 2): A(f"v_pk_add_f32 {v(b+8+e,2)}, {v(b+8+e,2)}, 1.0 op_sel_hi:[1,0]")
            for e in range(8): A(f"v_rcp_f32 v{b+8+e}, v{b+8+e}")
            for e in range(0, 8, 2): A(f"v_pk_fma_f32 {v(b+e,2)}, {v(b+e,2)}, {v(b+8+e,2)}, {v(eXF+8*tg+e,2)}")
            for e in range(4): A(f"v_cvt_pk_bf16_f32 v{b+16+e}, v{b+2*e}, v{b+2*e+1}")
            A(f"buffer_store_dwordx4 {v(b+16,4)}, v{eOF+tg}, {srd(rOUT)}, 0 offen")
        self.stamp(A, "end")
        if o.ts:
            A("v_writelane_b32 v0, s3, 0")
            A(f"v_lshlrev_b32 v2, 2, {L}"); A(f"s_lshl2_add_u32 s{sT0}, s2, s{sW}"); A(f"s_lshl_b32 s{sT0}, s{sT0}, 8"); A(f"s_add_u32 s{sT0}, s{sT0}, {WS_TS}")
            A(f"buffer_store_dword v0, v2, {srd(rWS)}, s{sT0} offen")
        A("s_endpgm")
        return A

    def helper(self):
        o = self.opt
        A = Asm(); L = f"v{vL}"
        A.raw("L_helper:")
        A("s_waitcnt lgkmcnt(0)")
        rK, rV, rSH = 32, 36, 40
        sHW = 60
        self.mksrd(A, rK, sK, S * D * 2); self.mksrd(A, rV, sV, S * D * 2); self.mksrd(A, rSH, sSH, D * 8)
        self.mksrd(A, rWS, sWS, WS_SIZE); self.mksrd(A, rDBG, sDBG, 256)
        A(f"s_sub_u32 s{sHW}, s2, 224")
        A(f"s_or_b32 s{sT0}, s{sHW}, s{sW}"); A(f"s_cmp_eq_u32 s{sT0}, 0"); A(f"s_cselect_b32 s{sT3}, 0, {BIG}"); A(f"s_add_u32 s{sT0}, s{sT3}, {WS_FL}")
        A(f"v_lshl_add_u32 v2, {L}, 4, s{sT0}")
        for e in range(4): A(f"v_mov_b32 v{4+e}, 0")
        clr = [A(f"buffer_store_dwordx4 v[4:7], v2, {srd(rWS)}, 0 offen offset:{m*1024} sc1") for m in range(4)]
        A(f"s_lshl_b32 s{sT0}, s{sHW}, 6"); A(f"s_lshl_b32 s{sT1}, s{sW}, 4"); A(f"s_add_u32 s{sT0}, s{sT0}, s{sT1}"); A(f"s_mul_i32 s{sT0}, s{sT0}, 896")
        A(f"v_lshl_add_u32 v8, {L}, 4, s{sT0}")
        for g in range(1, 4): A(f"v_add_u32 v{8+g}, {g*3584}, v8")
        for r in range(3): A(f"v_subrev_u32 v{12+r}, {(3-r)*896}, v8")
        A(f"v_lshlrev_b32 v15, 6, {L}")
        SHR, KR, VR, WW, KW, VT, AC = 16, 32, 108, 172, 204, 236, 240
        for m in range(4): A(f"buffer_load_dwordx4 {v(SHR+4*m,4)}, v15, {srd(rSH)}, 0 offen offset:{16*m}")
        for r in range(3): A(f"buffer_load_dwordx4 {v(KR+4*r,4)}, v{12+r}, {srd(rK)}, 0 offen")
        for t in range(16):
            A(f"buffer_load_dwordx4 {v(KR+4*(t+3),4)}, v{8+(t>>2)}, {srd(rK)}, 0 offen offset:{(t&3)*896}")
            A(f"buffer_load_dwordx4 {v(VR+4*t,4)}, v{8+(t>>2)}, {srd(rV)}, 0 offen offset:{(t&3)*896}")
        A(f"s_lshl2_add_u32 s{sT0}, s{sHW}, s{sW}"); A(f"s_mul_i32 s{sT0}, s{sT0}, 14336"); A(f"s_add_u32 s{sT0}, s{sT0}, {WS_YT}"); A(f"v_lshlrev_b32 v3, 4, {L}")
        for e in range(4): A(f"v_mov_b32 v{AC+e}, -1")
        A(f"v_mov_b32 v2, {BIG}"); A(f"v_writelane_b32 v2, s{sT3}, 0"); A("v_mov_b32 v7, 1")
        A.wait(vm=clr); A(f"buffer_store_dword v7, v2, {srd(rDBG)}, 0 offen sc1")
        for m in range(14):
            A(f"buffer_store_dwordx4 {v(AC,4)}, v3, {srd(rWS)}, s{sT0} offen offset:{(m&1)*1024} sc1")
            if m & 1: A(f"s_add_u32 s{sT0}, s{sT0}, 2048")
        A(f"s_sub_u32 s{sT0}, 3, s{sW}"); A(f"s_lshl_b32 s{sT0}, s{sT0}, 1"); A(f"v_and_b32 v4, 7, {L}"); A(f"v_xor_b32 v5, s{sT0}, v4")
        A("v_lshlrev_b32 v5, 4, v5"); A(f"v_lshl_add_u32 v5, {L}, 10, v5"); A("v_xor_b32 v6, 16, v5")
        for d in range(8):
            for pr_ in range(2):
                src = SHR + 2 * d + pr_
                A(f"v_lshlrev_b32 v{WW+8*(2*pr_)+d}, 16, v{src}"); A(f"v_and_b32 v{WW+8*(2*pr_+1)+d}, 0xffff0000, v{src}")
        def unpk(r):
            for e in range(4):
                A(f"v_lshlrev_b32 v{KW+8*(r&3)+2*e}, 16, v{KR+4*r+e}"); A(f"v_and_b32 v{KW+8*(r&3)+2*e+1}, 0xffff0000, v{KR+4*r+e}")
        for r in range(3): unpk(r)
        O = SHR
        for t in range(16):
            unpk(t + 3)
            ac = AC + 8 * (t & 1)
            for i in range(4):
                for e in range(4):
                    kw = v(KW + 8 * ((t + 3 - i) & 3) + 2 * e, 2); ww = v(WW + 8 * i + 2 * e, 2)
                    if i == 0: A(f"v_pk_mul_f32 {v(ac+2*e,2)}, {kw}, {ww}")
                    else: A(f"v_pk_fma_f32 {v(ac+2*e,2)}, {kw}, {ww}, {v(ac+2*e,2)}")
            for e in range(4):
                vt = VT + 2 * (e & 1)
                A(f"v_lshlrev_b32 v{vt}, 16, v{VR+4*t+e}"); A(f"v_and_b32 v{vt+1}, 0xffff0000, v{VR+4*t+e}")
                A(f"v_pk_mul_f32 {v(ac+2*e,2)}, {v(ac+2*e,2)}, {v(vt,2)}")
            if t & 1:
                dw = 3 - ((t & 7) >> 1)
                for d in range(8): A(f"v_cvt_pk_bf16_f32 v{O+4*d+dw}, v{AC+8+d}, v{AC+d}")
            if (t & 7) == 7:
                for d in range(8): A(f"ds_write_b128 v{6 if t < 8 else 5}, {v(O+4*d,4)} offset:{d*128}")
        A(f"v_lshrrev_b32 v10, 3, {L}"); A("v_lshlrev_b32 v11, 12, v10"); A("v_lshl_add_u32 v11, v4, 4, v11")
        A(f"s_mul_i32 s{sT0}, s{sW}, 14")
        A(f"s_lshl_b32 s{sT1}, s{sHW}, 7"); A(f"s_sub_u32 s{sT1}, {WS_KVR+3968}, s{sT1}"); A(f"s_lshl_b32 s{sT2}, s{sT0}, 15"); A(f"s_add_u32 s{sT1}, s{sT1}, s{sT2}")
        A(f"s_lshl_b32 s{sT2}, s{sT0}, 10"); A(f"v_lshl_add_u32 v10, v10, 7, s{sT2}")
        A.wait(alllgkm=True); A("s_barrier")
        for m in range(14):
            A(f"s_add_u32 s{sT2}, s{sT0}, {m}"); A(f"s_and_b32 s{sT2}, s{sT2}, 7"); A(f"v_xor_b32 v12, s{sT2}, v4"); A("v_lshl_add_u32 v12, v12, 4, v10")
            A(f"ds_read_b128 {v(32+4*m,4)}, v12 offset:{m*1024}")
        sts = []
        for m in range(14):
            sts.append(A(f"buffer_store_dwordx4 {v(32+4*m,4)}, v11, {srd(rWS)}, s{sT1} offen sc1"))
            A(f"s_add_u32 s{sT1}, s{sT1}, 32768")
        A(f"s_lshl2_add_u32 s{sT0}, s{sHW}, 128"); A(f"s_cmp_eq_u32 s{sW}, 0"); A(f"s_cselect_b32 s{sT0}, s{sT0}, {BIG}")
        A(f"v_mov_b32 v2, {BIG}"); A(f"v_writelane_b32 v2, s{sT0}, 0")
        A.wait(allvm=True); A("s_barrier"); A(f"buffer_store_dword v7, v2, {srd(rDBG)}, 0 offen sc1")
        if o.ts:
            A(f"{o.clk} s[62:63]"); A("s_waitcnt lgkmcnt(0)"); A("v_mov_b32 v4, s62"); A("v_writelane_b32 v4, s30, 0"); A(f"v_lshlrev_b32 v2, 2, v0"); A(f"s_lshl_b32 s{sT0}, s2, 10"); A(f"s_add_u32 s{sT0}, s{sT0}, {WS_TS}")
            A(f"buffer_store_dword v4, v2, {srd(rWS)}, s{sT0} offen")
        A("s_endpgm")
        return A

    def build(self):
        A = self.entry()
        self.main(A)
        t_main = A.finalize(); H = self.helper(); t_help = H.finalize()
        sys.stderr.write(f"main: {A.stats}  helper: {H.stats}\n")
        head = open(self.opt.ref).read().split("; Override launch")[0]
        txt = head + f"; @launch grid=(256,1,1) block=(256,1,1) lds={LDS_BYTES}\n"
        txt += f'.amdgcn_target "amdgcn-amd-amdhsa--gfx950"\n.text\n.globl {NAME}_kernel\n.p2align 8\n.type {NAME}_kernel,@function\n{NAME}_kernel:\n'
        txt += t_main + "\n" + t_help + "\n" + "\n".join(self.slow) + "\nL_exit:\n    s_endpgm\n"
        txt += f""".section .rodata,"a"
.p2align 6
.amdhsa_kernel {NAME}_kernel
  .amdhsa_next_free_vgpr 512
  .amdhsa_next_free_sgpr 102
  .amdhsa_accum_offset 256
  .amdhsa_group_segment_fixed_size 0
  .amdhsa_kernarg_size 104
  .amdhsa_user_sgpr_count 2
  .amdhsa_user_sgpr_kernarg_segment_ptr 1
  .amdhsa_system_sgpr_workgroup_id_x 1
  .amdhsa_float_denorm_mode_32 3
.end_amdhsa_kernel
"""
        if self.opt.ts: txt = txt.replace("; @launch", "; stamps: " + ",".join(self.tsnames) + ("\n; clk=cycles" if self.opt.clk == "s_memtime" else "") + "\n; @launch", 1)
        return txt

if __name__ == "__main__":
    p = argparse.ArgumentParser()
    p.add_argument("-o", default=f"cdna_kernels/{NAME}.s")
    p.add_argument("--ref", default=f"cdna_kernels/{NAME}.s.ref")
    p.add_argument("--ts", default="")
    p.add_argument("--clk", default="s_memrealtime")
    p.add_argument("--pre_gap", type=int, default=14)
    p.add_argument("--pre2", type=int, default=0)
    p.add_argument("--v3", type=int, default=4)
    p.add_argument("--cgap", type=int, default=4)
    p.add_argument("--ybar", type=int, default=23)
    p.add_argument("--pk", type=int, default=1)
    p.add_argument("--nopoll", action="store_true")
    p.add_argument("--yld", type=int, default=17)
    p.add_argument("--xpre", type=int, default=12)
    p.add_argument("--probe0", type=int, default=0)
    p.add_argument("--pollarr", type=int, default=5)
    p.add_argument("--pollb1", type=int, default=20)
    p.add_argument("--chkb1", type=int, default=70)
    p.add_argument("--sig2", type=int, default=95)
    p.add_argument("--pollb2", type=int, default=144)
    p.add_argument("--chkb2", type=int, default=8)
    p.add_argument("--slowdrain", type=int, default=1)
    p.add_argument("--norot", action="store_true")
    p.add_argument("--nopf", action="store_true")
    o = p.parse_args()
    open(o.o, "w").write(Gen(o).build())
```

```python
import re

REG_RE = re.compile(r'^(-?)(abs\()?([vas])(\d+)\)?$')
RNG_RE = re.compile(r'^(-?)([vas])\[(\d+):(\d+)\]$')

def regs_of(tok):
    tok = tok.strip()
    m = REG_RE.match(tok)
    if m: return [(m.group(3), int(m.group(4)))]
    m = RNG_RE.match(tok)
    if m: return [(m.group(2), i) for i in range(int(m.group(3)), int(m.group(4)) + 1)]
    if tok == 'vcc': return [('s', 'vcc')]
    if tok == 'exec': return [('s', 'exec')]
    if tok == 'm0': return [('s', 'm0')]
    return []

TRANS = ('v_exp_f32', 'v_log_f32', 'v_rcp_f32', 'v_rsq_f32', 'v_sqrt_f32', 'v_sin_f32', 'v_cos_f32')

class Ins:
    __slots__ = ('text', 'op', 'rd', 'wr', 'kind', 'passes', 'mA', 'mC', 'mD', 'tag', 'pend', 'wide_store', 'is_dma', 'sdata')
    def __init__(self, text, tag=None):
        self.text = text; self.tag = tag
        t = text.split(';')[0].strip()
        parts = t.split(None, 1)
        op = parts[0]; self.op = op
        rest = parts[1] if len(parts) > 1 else ''
        ops = [o.strip() for o in rest.split(',')] if rest else []
        mods = ''
        if ops:
            sp = ops[-1].split(None, 1)
            ops[-1] = sp[0]; mods = sp[1] if len(sp) > 1 else ''
        R = [regs_of(o) for o in ops]
        rd, wr = [], []
        self.passes = 0; self.mA = []; self.mC = []; self.mD = []; self.pend = None
        self.wide_store = False; self.is_dma = False; self.sdata = []
        flat = lambda L: [x for l in L for x in l]
        if op.startswith('v_mfma'):
            self.kind = 'mfma'
            self.passes = 8 if '32x32' in op else (4 if '16x16' in op else 2)
            wr = R[0]; self.mD = R[0]; self.mA = R[1] + R[2]; self.mC = R[3]; rd = R[1] + R[2] + R[3]
        elif op.startswith('ds_read') or op.startswith('ds_bpermute') or op.startswith('ds_swizzle'):
            self.kind = 'ds'; wr = R[0]; rd = flat(R[1:]); self.pend = 'lgkm'
            if 'd16' in op: rd = rd + R[0]
        elif op.startswith('ds_write'):
            self.kind = 'ds'; rd = flat(R); self.pend = 'lgkm'
        elif op.startswith('buffer_load') or op.startswith('global_load'):
            self.kind = 'vmem'; self.pend = 'vm'
            if re.search(r'\blds\b', mods) or '_lds_' in op:
                rd = flat(R) + [('s', 'm0')]; self.is_dma = True
            else:
                wr = R[0]; rd = flat(R[1:])
                if 'd16' in op: rd = rd + R[0]
        elif op.startswith('buffer_store') or op.startswith('global_store') or op.startswith('buffer_atomic'):
            self.kind = 'vmem'; self.pend = 'vm'; rd = flat(R)
            self.sdata = R[0] if op.startswith('buffer') else R[1]
            self.wide_store = op.endswith('x4') or op.endswith('x3')
        elif op.startswith('v_'):
            self.kind = 'trans' if op.replace('_e32', '').replace('_e64', '') in TRANS else 'valu'
            if op.startswith('v_permlane') and 'swap' in op:
                rd = flat(R); wr = flat(R)
            elif op.startswith('v_nop'):
                pass
            else:
                wr = R[0]; rd = flat(R[1:])
                if op.startswith(('v_fmac', 'v_dot2c', 'v_mac')): rd = rd + R[0]
                if op.startswith('v_cndmask') and len(ops) == 3: rd = rd + [('s', 'vcc')]
                if op.startswith('v_cmpx'): wr = wr + [('s', 'exec')]
                if '_co_' in op and len(ops) >= 4: wr = R[0] + R[1]; rd = flat(R[2:])
                if 'dpp' in op or 'row_' in mods or 'quad_perm' in mods or 'wave_' in mods: rd = rd + R[0]
        elif op.startswith('s_load') or op in ('s_memtime', 's_memrealtime'):
            self.kind = 'smem'; wr = R[0]; rd = flat(R[1:]); self.pend = 'smem'
        elif op.startswith('s_'):
            self.kind = 'salu'
            if op.startswith(('s_cmp', 's_waitcnt', 's_barrier', 's_nop', 's_branch', 's_cbranch', 's_endpgm', 's_setprio', 's_sleep', 's_bitcmp', 's_setpc')):
                rd = flat(R)
            else:
                wr = R[0]; rd = flat(R[1:])
                if op.startswith(('s_addk', 's_mulk')): rd = rd + R[0]
                if 'saveexec' in op: wr = wr + [('s', 'exec')]; rd = rd + [('s', 'exec')]
        else:
            raise ValueError('unknown instr: ' + text)
        self.rd = set(rd); self.wr = set(wr)
        self.text = text

class Wait:
    def __init__(self, vm=None, lgkm=None, allvm=False, alllgkm=False):
        self.vm = vm or []; self.lgkm = lgkm or []; self.allvm = allvm; self.alllgkm = alllgkm
class Raw:
    def __init__(self, text, reset=False): self.text = text; self.reset = reset

class Asm:
    def __init__(self):
        self.items = []
    def __call__(self, text, tag=None):
        i = Ins(text, tag); self.items.append(i); return i
    def add(self, *items):
        r = None
        for item in items:
            if isinstance(item, str): r = self(item)
            else: self.items.append(item); r = item
        return r
    def wait(self, **kw): self.items.append(Wait(**kw))
    def raw(self, text, reset=False): self.items.append(Raw(text, reset))
    def comment(self, text): self.items.append(Raw('; ' + text))

    def finalize(self, verbose=False):
        out = []
        vmq, lgq = [], []
        smem = False
        stats = {'waits': 0, 'nops': 0}
        def emit_wait(nvm, nlg):
            nonlocal vmq, lgq, smem
            parts = []
            if nvm is not None and nvm < len(vmq):
                nvm = min(nvm, 63); parts.append(f'vmcnt({nvm})'); vmq = vmq[len(vmq) - nvm:] if nvm else []
            if nlg is not None and (nlg < len(lgq) or (smem and nlg == 0)):
                nlg = min(nlg, 15)
                if smem: nlg = 0
                parts.append(f'lgkmcnt({nlg})'); lgq = lgq[len(lgq) - nlg:] if nlg else []
                if nlg == 0: smem = False
            if parts:
                out.append(Ins('s_waitcnt ' + ' '.join(parts))); stats['waits'] += 1
        smem_regs = set()
        seen = set()
        for it in self.items:
            if isinstance(it, Ins): seen.add(id(it))
            if isinstance(it, Wait):
                for o in list(it.vm) + list(it.lgkm): assert id(o) in seen, 'wait on op not yet issued: ' + o.text
            if isinstance(it, Raw):
                out.append(it)
                if it.reset: vmq, lgq, smem, smem_regs = [], [], False, set()
                continue
            if isinstance(it, Wait):
                nvm = nlg = None
                if it.allvm: nvm = 0
                if it.alllgkm: nlg = 0
                for o in it.vm:
                    if o in vmq:
                        n = len(vmq) - 1 - vmq.index(o); nvm = n if nvm is None else min(nvm, n)
                for o in it.lgkm:
                    if o in lgq:
                        n = len(lgq) - 1 - lgq.index(o); nlg = n if nlg is None else min(nlg, n)
                emit_wait(nvm, nlg)
                if not smem: smem_regs = set()
                continue
            touched = it.rd | it.wr
            nvm = nlg = None
            for k, o in enumerate(vmq):
                if o.wr & touched: nvm = len(vmq) - 1 - k
            for k, o in enumerate(lgq):
                if o.wr & touched: nlg = len(lgq) - 1 - k
            if smem and (smem_regs & touched): nlg = 0
            if smem and it.pend == 'lgkm': nlg = 0
            if it.op == 's_waitcnt':
                m = re.search(r'vmcnt\((\d+)\)', it.text)
                if m:
                    n = int(m.group(1)); vmq = vmq[len(vmq) - n:] if n and n < len(vmq) else ([] if n == 0 else vmq)
                m = re.search(r'lgkmcnt\((\d+)\)', it.text)
                if m:
                    n = int(m.group(1)); lgq = lgq[len(lgq) - n:] if n and n < len(lgq) else ([] if n == 0 else lgq)
                    if n == 0: smem = False; smem_regs = set()
                out.append(it); continue
            emit_wait(nvm, nlg)
            if not smem: smem_regs = set()
            out.append(it)
            if it.pend == 'vm':
                vmq.append(it)
                assert len(vmq) <= 63, 'too many outstanding vmem ops at: ' + it.text
            elif it.pend == 'lgkm': lgq.append(it)
            elif it.pend == 'smem': smem = True; smem_regs |= it.wr
        res = []
        hist = []
        def need(prev, cur):
            n = 0
            pv = prev.kind in ('valu', 'trans'); cv = cur.kind in ('valu', 'trans')
            pw = prev.wr
            if pv:
                vw = {r for r in pw if r[0] in 'va'}; sw = {r for r in pw if r[0] == 's'}
                if cur.kind == 'mfma' and (vw & cur.rd): n = max(n, 2)
                if cur.kind == 'mfma' and ('s', 'exec') in sw: n = max(n, 4)
                if cur.op.startswith(('v_readlane', 'v_readfirstlane')) and (vw & cur.rd): n = max(n, 1)
                if cur.op.startswith('v_permlane') and (vw & cur.rd): n = max(n, 2)
                if cv and ('row_' in cur.text or 'quad_perm' in cur.text or 'wave_' in cur.text) and (vw & cur.rd): n = max(n, 2)
                if cv and (sw & cur.rd): n = max(n, 4 if cur.op.startswith(('v_readlane', 'v_writelane')) else 2)
                if cur.kind == 'vmem' and (sw & cur.rd): n = max(n, 5)
                if cur.kind in ('salu', 'smem') and (sw & cur.rd): n = max(n, 2)
                if ('s', 'exec') in sw and cv: n = max(n, 5)
                if prev.kind == 'trans' and cv and (vw & cur.rd): n = max(n, 1)
                if prev.kind == 'trans' and cur.kind in ('vmem', 'ds') and (vw & cur.rd): n = max(n, 1)
                if (('op_sel' in prev.text and not prev.op.startswith('v_pk_')) or 'sdwa' in prev.text) and cv and (vw & (cur.rd | cur.wr)): n = max(n, 1)
            if prev.kind == 'mfma':
                D = set(prev.mD); p = prev.passes
                big = {2: 5, 4: 8, 8: 12}[p]
                if cur.kind == 'mfma':
                    if D & set(cur.mA): n = max(n, big)
                    if D & set(cur.mC):
                        if cur.mC == prev.mD and cur.passes == p: n = max(n, 2 if p == 2 else 0)
                        else: n = max(n, {2: 4, 4: 6, 8: 10}[p])
                    elif D & set(cur.mD): n = max(n, big)
                elif cur.kind in ('valu', 'trans', 'vmem', 'ds'):
                    if D & (cur.rd | cur.wr): n = max(n, big)
                if cv and (set(prev.mC) & cur.wr): n = max(n, {2: 1, 4: 3, 8: 7}[p])
            if prev.kind == 'salu' and ('s', 'm0') in pw and cur.is_dma: n = max(n, 1)
            if prev.wide_store and (set(prev.sdata) & cur.wr): n = max(n, 2 if cv else 1)
            return n
        for it in out:
            if isinstance(it, Raw):
                res.append(it.text); continue
            req = 0
            for (p, d) in hist:
                k = need(p, it) - d
                if k > req: req = k
            if req > 0:
                res.append(f'    s_nop {req - 1}'); stats['nops'] += req
                if verbose: res[-1] += f'   ; hazard before {it.op}'
                hist = [(p, d + req) for (p, d) in hist]
            res.append('    ' + it.text)
            inc = 1
            if it.op == 's_nop': inc = int(it.text.split()[1]) + 1
            hist = [(p, d + inc) for (p, d) in hist if d + inc < 20]
            hist.append((it, 0))
        self.stats = stats
        return '\n'.join(res)
```

```python
import sys, argparse
from asmfw import Asm, Ins, Wait, Raw

NAME = "recurrent_scan__ssm_conv_h3__glu_gated_geglu__prompt"
S, D, F = 2048, 448, 1792
WS_H, WS_KVR, WS_YT, WS_ST, WS_FL, WS_TS = 0, 8 << 20, 10 << 20, 12 << 20, 13 << 20, 14 << 20
WS_SIZE = 15 << 20
FL_B, FL_C, FL_A = 0, 4096, 4096 + 7 * 512
BIG = 0x7f000000
SLOT = 16384
CB = 5 * SLOT
KCH, KCP = 16640, 4160
RB, RCH = CB + 33280, 4608
XS1 = 4 * SLOT
XS2 = CB + 43008
BSLOT = [6, 7, 0, 1, 2, 3, 4]
DSA = [8, 9, 5, 6, 7, 0, 1]
DSB = [8, 9, 2, 3, 4, 0, 1]
LDS_BYTES = 163840
sX, sK, sV, sSH, sKF, sD, sWG, sWU, sWD, sOUT, sDBG, sWS = 4, 6, 8, 10, 12, 14, 18, 20, 22, 24, 26, 28
rX, rW, rWD, rWS, rKF, rOUT, rDBG = 32, 36, 40, 44, 48, 52, 56
sXO, sWO, sDO, sHO = 60, 67, 74, 81
sW, sLW, sRT, sFT, sRHO, sI, sJ, sT0, sT1, sT2, sT3 = 88, 89, 90, 91, 92, 93, 94, 95, 96, 97, 98
sM1, sM2, sMH = 16, 30, 0
sDV, sCNT = 99, 100
sHS = [6, 7, 8, 9]
sR64, sDT, sYO = 10, 11, 101
def srd(r): return f"s[{r}:{r+3}]"
def v(a, n=1): return f"v{a}" if n == 1 else f"v[{a}:{a+n-1}]"
def a_(a, n=1): return f"a{a}" if n == 1 else f"a[{a}:{a+n-1}]"
def sp(a): return f"s[{a}:{a+1}]"
vL = 1
vXD, vWD_, vDD = 2, 6, 10
def vXR(st, b, s): return 68 + st * 8 + b * 4 + s
def vWR(st, al): return 30 + st * 2 + al
def vDR(st, dh): return 34 + st * 2 + dh
vH = [40, 41, 42, 43]
vA0, vA1, vIR = 44, 46, 48
vFLG = 50
vTMP = 51
vAC = [52, 56]; vBC = [60, 64]
vT, vN = 68, 72
vO = [76, 80]
vSEL = 92; vSUM, vSQ, vSA, vSB0, vSQ2 = 96, 100, 104, 108, 88
def vWF(buf, al): return 112 + buf * 8 + al * 4
def vACC(g, al, be): return 128 + g * 64 + (2 * al + be) * 16
def aXF(s, st, be): return s * 32 + (st * 2 + be) * 4
def aWD(s, sg, dh): return s * 32 + (sg * 2 + dh) * 4
def aHA(s, sg, tg): return s * 32 + 16 + (sg * 2 + tg) * 4
HB_REGS = [v(44 + 4 * i, 4) for i in range(17)] + [a_(224 + 4 * i, 4) for i in range(8)] + [v(240 + 4 * i, 4) for i in range(3)]
def rHB(s, sg, tg): return HB_REGS[tg * 14 + s * 2 + sg]

C0 = -2.0 * 0.7978845608028654 * 1.4426950408889634
C1 = C0 * 0.044715
import struct
def fl(x): return "0x%08x" % struct.unpack("<I", struct.pack("<f", x))[0]

MF32 = "v_mfma_f32_32x32x16_bf16"
MF16 = "v_mfma_f32_16x16x32_bf16"
MF4 = "v_mfma_f32_4x4x4_16b_bf16"

def cost(it):
    if isinstance(it, str): it = Ins(it)
    if not isinstance(it, Ins): return 0
    return 8 if it.kind == 'trans' else 4

class Call:
    def __init__(self, fn): self.fn = fn

class Skip:
    def __init__(self, n): self.n = n

class Fill:
    def __init__(self): self.q = []
    def add(self, *its):
        r = None
        for it in its:
            if isinstance(it, str): it = Ins(it)
            self.q.append(it); r = it
        return r
    def take(self, A, budget):
        while self.q:
            if isinstance(self.q[0], Skip):
                if budget < (1 << 20) and self.q[0].n > 0: self.q[0].n -= 1; break
                self.q.pop(0); continue
            c = cost(self.q[0])
            if c > budget and c > 0: break
            it = self.q.pop(0); budget -= c
            if isinstance(it, Call): it.fn()
            else: A.add(it)
            if isinstance(it, Ins) and it.op.startswith(('s_cmp', 's_bitcmp')):
                assert self.q[0].op.startswith('s_cselect')
                while self.q and isinstance(self.q[0], Ins) and self.q[0].op.startswith('s_cselect'):
                    A.add(self.q.pop(0)); budget -= 4
            if isinstance(it, Ins) and it.op.startswith('v_cmp') and self.q and isinstance(self.q[0], Ins) and self.q[0].op.startswith(('s_cbranch', 's_nop')):
                A.add(self.q.pop(0)); budget -= 4
        return budget
    def flush(self, A):
        while self.q: self.take(A, 1 << 20)

class VQ:
    def __init__(self): self.q = []
    def add(self, its):
        its = [Ins(i) if isinstance(i, str) else i for i in its]
        g = []
        for it in its:
            g.append(it)
            if isinstance(it, Ins) and it.kind == 'vmem': self.q.append(g); g = []
        if g: self.q.append(g)
        return its[-1]
    def take(self, A):
        if not self.q: return 0
        g = self.q.pop(0)
        for it in g: A.add(it)
        return sum(cost(i) for i in g)
    def flush(self, A):
        while self.q: self.take(A)

class Gen:
    def __init__(self, opt):
        self.opt = opt; self.slow = []; self.nslow = 0; self.nts = 0
    def mksrd(self, A, r, p, size):
        A(f"s_mov_b32 s{r}, s{p}"); A(f"s_mov_b32 s{r+1}, s{p+1}"); A(f"s_mov_b32 s{r+2}, {size}"); A(f"s_mov_b32 s{r+3}, 0x20000")
    def stamp(self, A, name):
        if not self.opt.ts: return
        sel = self.opt.ts.split(',')
        if not (name in sel or ('all' in sel and '.' not in name) or name.split('.')[0] + '.*' in sel): return
        k = self.nts; self.nts += 1
        self.tsnames.append(name)
        A(f"{self.opt.clk} s[18:19]"); A("s_waitcnt lgkmcnt(0)")
        A(f"v_writelane_b32 v0, s18, {k+1}")
    def poll_items(self, load_text, dst, n, level, alt_reg=None):
        k = self.nslow; self.nslow += 1
        ld = Ins(load_text)
        chk = []; assert n == 1
        chk += [Ins(f"v_cmp_gt_u32 vcc, {level}, v{dst}"), Ins(f"s_cbranch_vccnz L_slow{k}") if not self.opt.nopoll else Ins("s_nop 0"), Raw(f"L_back{k}:")]
        sl = [f"L_slow{k}:", f"    s_mov_b32 s{sCNT}, 0x20000", f"L_slowl{k}:", "    " + load_text, "    s_waitcnt vmcnt(0)",
              f"    v_cmp_gt_u32 vcc, {level}, v{dst}", "    s_nop 4", f"    s_cbranch_vccz L_back{k}", f"    s_sleep {self.opt.slp}",
              f"    s_sub_u32 s{sCNT}, s{sCNT}, 1", f"    s_cmp_lg_u32 s{sCNT}, 0", f"    s_cbranch_scc1 L_slowl{k}", f"    s_branch L_back{k}"]
        self.slow += sl
        return ld, chk

    def tag_check(self, loads, regs, tmp):
        k = self.nslow; self.nslow += 1
        body = []; src = []
        for i, r in enumerate(regs):
            if r[0] == 'a': body.append(f"v_accvgpr_read_b32 v{tmp+i}, {r}"); src.append(f"v{tmp+i}")
            else: src.append(r)
        if len(src) == 4: body += [f"v_max3_u32 v{tmp}, {src[0]}, {src[1]}, {src[2]}", f"v_max_u32 v{tmp}, v{tmp}, {src[3]}"]
        else: body += [f"v_max_u32 v{tmp}, {src[0]}, {src[1]}"]
        body.append(f"v_cmp_eq_u32 vcc, -1, v{tmp}")
        def issued(): assert all(any(isinstance(x, Ins) and x.text == t for x in self.A.items) for t in loads), "check before its loads"
        chk = [Call(issued)] + [Ins(t) for t in body] + [Ins(f"s_cbranch_vccnz L_slow{k}") if not self.opt.nopoll else Ins("s_nop 0"), Raw(f"L_back{k}:")]
        self.slow += [f"L_slow{k}:", f"    s_mov_b32 s{sCNT}, 0x20000", f"L_slowl{k}:"] + ["    " + t for t in loads] + ["    s_waitcnt vmcnt(0)"] + ["    " + t for t in body]
        self.slow += ["    s_nop 4", f"    s_cbranch_vccz L_back{k}", f"    s_sleep {self.opt.slp}", f"    s_sub_u32 s{sCNT}, s{sCNT}, 1", f"    s_cmp_lg_u32 s{sCNT}, 0", f"    s_cbranch_scc1 L_slowl{k}", f"    s_branch L_back{k}"]
        return chk

    def entry(self):
        A = Asm()
        if self.opt.ts: A(f"{self.opt.clk} s[30:31]")
        A("s_cmp_ge_u32 s2, 256"); A("s_cbranch_scc1 L_exit")
        A("s_load_dwordx16 s[4:19], s[0:1], 0"); A("s_load_dwordx8 s[20:27], s[0:1], 64"); A("s_load_dwordx2 s[28:29], s[0:1], 96")
        A(f"v_and_b32 v{vL}, 63, v0"); A("v_lshrrev_b32 v2, 6, v0"); A(f"v_readfirstlane_b32 s{sW}, v2")
        A("s_cmp_ge_u32 s2, 224"); A("s_cbranch_scc1 L_helper")
        return A

    def main(self, A):
        o = self.opt
        L = f"v{vL}"
        self.tsnames = []; self.A = A
        sTH, sFH = sT2, sT3
        A(f"s_and_b32 s{sT0}, s2, 7"); A(f"s_lshr_b32 s{sT1}, s2, 3")
        A(f"s_and_b32 s{sI}, s{sT1}, 3"); A(f"s_lshr_b32 s{sJ}, s{sT1}, 2")
        A(f"s_lshr_b32 s{sRT}, s{sT0}, 1"); A(f"s_lshl2_add_u32 s{sRT}, s{sRT}, s{sI}")
        A(f"s_and_b32 s{sFT}, s{sT0}, 1"); A(f"s_mul_i32 s{sFT}, s{sFT}, 7"); A(f"s_add_u32 s{sFT}, s{sFT}, s{sJ}")
        def kappa(s):
            if o.rot == 7:
                if s == 0: r = [f"s_lshl1_add_u32 s{sRHO}, s{sI}, s{sJ}", f"s_sub_u32 s{sT1}, s{sRHO}, 7", f"s_cselect_b32 s{sRHO}, s{sRHO}, s{sT1}"]
                else: r = [f"s_add_u32 s{sRHO}, s{sRHO}, 1", f"s_cmp_eq_u32 s{sRHO}, 7", f"s_cselect_b32 s{sRHO}, 0, s{sRHO}"]
            elif s == 0: return [f"s_mov_b32 s{sXO}, 0", f"s_mov_b32 s{sWO}, 0"]
            elif s == 1:
                if o.rot == 0: r = [f"s_mov_b32 s{sRHO}, 1"]
                else: r = [f"s_mul_i32 s{sRHO}, s{sI}, 3", f"s_add_u32 s{sRHO}, s{sRHO}, 1", f"s_lshr_b32 s{sRHO}, s{sRHO}, 1", f"s_add_u32 s{sRHO}, s{sRHO}, s{sJ}",
                           f"s_add_u32 s{sRHO}, s{sRHO}, 1", f"s_sub_u32 s{sT1}, s{sRHO}, 6", f"s_cmp_gt_u32 s{sRHO}, 6", f"s_cselect_b32 s{sRHO}, s{sT1}, s{sRHO}"]
            else: r = [f"s_add_u32 s{sRHO}, s{sRHO}, 1", f"s_cmp_eq_u32 s{sRHO}, 7", f"s_cselect_b32 s{sRHO}, 1, s{sRHO}"]
            return r + [f"s_lshl_b32 s{sXO+s}, s{sRHO}, 7", f"s_mul_i32 s{sWO+s}, s{sRHO}, {64*3584}"]
        for t in kappa(0): A(t)
        A(f"s_lshl_b32 s{sLW}, s{sW}, 12")
        A(f"v_lshrrev_b32 v44, 3, {L}"); A(f"v_and_b32 v45, 7, {L}"); A(f"v_lshrrev_b32 v46, 4, {L}")
        A(f"s_lshl2_add_u32 s{sT1}, s{sRT}, s{sW}"); A(f"s_mul_i32 s{sT1}, s{sT1}, {32*896}")
        A("v_mul_u32_u24 v47, 896, v44"); A(f"v_add_u32 v47, s{sT1}, v47")
        A("v_xor_b32 v48, v45, v46"); A(f"v_lshl_add_u32 v{vXD}, v48, 4, v47")
        A(f"v_add_u32 v{vXD+1}, 6144, v{vXD}"); A(f"v_xor_b32 v{vXD+1}, 64, v{vXD+1}")
        A(f"v_add_u32 v{vXD+2}, {2*6144}, v{vXD}"); A(f"v_add_u32 v{vXD+3}, {2*6144}, v{vXD+1}")
        A(f"s_and_b32 s{sTH}, s{sW}, 1"); A(f"s_mul_i32 s{sT1}, s{sTH}, {32*3584}"); A(f"s_lshl_b32 s{sT0}, s{sFT}, 8"); A(f"s_add_u32 s{sT1}, s{sT1}, s{sT0}")
        A("v_mul_u32_u24 v47, 3584, v44"); A(f"v_add_u32 v47, s{sT1}, v47")
        A(f"s_and_b32 s{sT0}, s{sW}, 2")
        A("v_and_b32 v48, 1, v46"); A(f"v_or_b32 v48, s{sT0}, v48"); A("v_lshlrev_b32 v48, 1, v48"); A("v_xor_b32 v48, v45, v48")
        A(f"v_lshl_add_u32 v{vWD_}, v48, 4, v47")
        for m in range(1, 4): A(f"v_add_u32 v{vWD_+m}, {m*27648}, v{vWD_}")
        A(f"s_mov_b32 s{rX+2}, {S*D*2}"); A(f"s_mov_b32 s{rX+3}, 0x20000"); A(f"s_mov_b32 s{rW+2}, {D*F*2}"); A(f"s_mov_b32 s{rW+3}, 0x20000")
        A(f"s_mov_b32 m0, s{sLW}"); A(f"s_cmp_ge_u32 s{sW}, 2")
        A(f"s_mov_b32 s{rX}, s{sX}"); A(f"s_mov_b32 s{rX+1}, s{sX+1}")
        A(f"s_cselect_b32 s{rW}, s{sWU}, s{sWG}"); A(f"s_cselect_b32 s{rW+1}, s{sWU+1}, s{sWG+1}")
        if o.ts: A("s_mov_b32 s3, s30")
        def m0set(base): return Ins(f"s_add_u32 m0, s{sLW}, {base}") if base else Ins(f"s_mov_b32 m0, s{sLW}")
        def dma_x(s): return [m0set(2 * (s & 3) * SLOT)] + [Ins(f"buffer_load_dwordx4 v{vXD+m}, {srd(rX)}, s{sXO+s} offen offset:{m*1024} lds") for m in range(4)]
        def dma_w(slot, s): return [m0set(slot * SLOT)] + [Ins(f"buffer_load_dwordx4 v{vWD_+m}, {srd(rW)}, s{sWO+s} offen offset:{m*1024} lds") for m in range(4)]
        def dma_d(slot, s): return [m0set(slot * SLOT)] + [Ins(f"buffer_load_dwordx4 v{vDD+m}, {srd(rWD)}, s{sDO+s} offen offset:{m*1024} lds") for m in range(4)]
        stA = {}
        self.stamp(A, "S.karg")
        for it in dma_x(0)[1:] + dma_w(1, 0): A.add(it)
        stA[0] = A.items[-1]
        self.stamp(A, "S.iss0")
        if o.probe0: A.wait(vm=[stA[0]]); self.stamp(A, "S.land0")
        Q = Fill()
        if not o.nopf:
            A(f"s_getpc_b64 {sp(sM1)}"); A.raw("L_pc:")
            A(f"v_lshlrev_b32 v47, 7, {L}"); A(f"s_lshl_b32 s{sT0}, s{sW}, 13"); A(f"v_add_u32 v47, s{sT0}, v47"); A("v_min_u32 v47, L_exit-L_pc, v47"); A(f"global_load_dword v255, v47, {sp(sM1)}")
        for t in kappa(1): A(t)
        for s in range(2, 7): Q.add(*kappa(s))
        Q.add(f"s_lshr_b32 s{sFH}, s{sW}, 1")
        Q.add(f"v_and_b32 v47, 31, {L}", f"v_lshrrev_b32 v48, 5, {L}", f"v_bfe_u32 v49, {L}, 1, 3", "v_xor_b32 v49, v49, v48", "v_lshlrev_b32 v49, 4, v49", "v_lshl_add_u32 v49, v47, 7, v49")
        Q.add(f"s_lshl1_add_u32 s{sT0}, s{sTH}, s{sFH}", f"s_lshl_b32 s{sT0}, s{sT0}, 12", f"v_add_u32 v{vXR(0,0,0)}, s{sT0}, v49")
        for s in range(1, 4): Q.add(f"v_xor_b32 v{vXR(0,0,s)}, {32*s}, v{vXR(0,0,0)}")
        for s in range(4): Q.add(f"v_xor_b32 v{vXR(0,1,s)}, 4096, v{vXR(0,0,s)}")
        for b in range(2):
            for s in range(4): Q.add(f"v_or_b32 v{vXR(1,b,s)}, 0x10000, v{vXR(0,b,s)}")
        Q.add(f"v_bfe_u32 v50, {L}, 2, 2", "v_lshl_add_u32 v51, v48, 3, v50", "v_lshlrev_b32 v51, 7, v51", f"v_bfe_u32 v52, {L}, 4, 1", f"v_and_b32 v53, 1, {L}",
              f"v_bfe_u32 v54, {L}, 1, 1", f"v_bfe_u32 v55, {L}, 3, 1")
        Q.add("v_lshl_add_u32 v56, v54, 13, v51", "v_lshl_add_u32 v56, v53, 4, v56", "v_lshl_add_u32 v56, v52, 3, v56", "v_lshl_add_u32 v57, v54, 1, v55",
              f"v_xor_b32 v57, s{sW}, v57", f"v_lshl_add_u32 v{vWR(0,0)}, v57, 5, v56", f"v_xor_b32 v{vWR(0,1)}, 32, v{vWR(0,0)}",
              f"v_or_b32 v{vWR(1,0)}, 0x10000, v{vWR(0,0)}", f"v_or_b32 v{vWR(1,1)}, 0x10000, v{vWR(0,1)}")
        Q.add(f"v_and_b32 v57, 7, {L}", "v_lshlrev_b32 v58, 2, v52", "v_cmp_eq_u32 vcc, v57, v58", "v_mov_b32 v57, 0x3f803f80")
        for e in range(4): Q.add(f"v_cndmask_b32 v{vSEL+e}, 0, v57, vcc")
        Q.add(f"s_lshl_b32 s{sT0}, s2, 2", f"s_load_dword s{sDV}, {sp(sD)}, s{sT0}")
        V = VQ()
        stA[1] = V.add(dma_x(1) + dma_w(3, 1))
        while V.q: V.take(A); Q.take(A, 4 * o.pre_gap)
        Q.flush(A)
        self.stamp(A, "S.q")
        stA[2] = V.add(dma_x(2) + dma_w(5, 2))
        for _ in range(o.pre2): V.take(A)
        stA[3] = V.add(dma_x(3) + dma_w(7, 3))
        A.wait(alllgkm=True)
        self.stamp(A, "setup")

        FQ = Fill(); VL = VQ()
        cvA, cvB, cD, vRW, vRZ, vFX, vFD, vKW, vX2, vX1o, vX1p, vST, vPD, vPB = 14, 15, 16, 20, 21, 22, 23, 24, 25, 26, 27, 28, 29, 5
        q = FQ
        q.add(f"s_and_b32 s{sT0}, s2, 7", f"s_lshl2_add_u32 s{sR64}, s{sT0}, s{sI}", f"s_mov_b32 s{sDT}, s{sJ}")
        for r, p_, sz in ((rWD, sWD, D * F * 2), (rWS, sWS, WS_SIZE), (rKF, sKF, D * S * 2), (rOUT, sOUT, S * D * 2), (rDBG, sDBG, 256)):
            q.add(f"s_mov_b32 s{r}, s{p_}", f"s_mov_b32 s{r+1}, s{p_+1}", f"s_mov_b32 s{r+2}, {sz}", f"s_mov_b32 s{r+3}, 0x20000")
        srd_done = q.add("s_nop 0")
        q.add("v_lshl_add_u32 v56, v53, 5, v51", "v_lshl_add_u32 v56, v52, 4, v56", "v_lshl_add_u32 v56, v54, 3, v56", f"v_add_u32 v56, s{sLW}, v56",
              f"v_lshl_add_u32 v{vDR(0,0)}, v55, 6, v56", f"v_xor_b32 v{vDR(0,1)}, 64, v{vDR(0,0)}")
        for dh in range(2): q.add(f"v_or_b32 v{vDR(1,dh)}, 0x10000, v{vDR(0,dh)}", f"v_or_b32 v{vDR(2,dh)}, 0x20000, v{vDR(0,dh)}")
        q.add("v_mul_u32_u24 v47, 896, v44", f"s_lshl_b32 s{sT0}, s{sDT}, 7", f"v_add_u32 v47, s{sT0}, v47", "v_xor_b32 v58, v45, v58", f"v_lshl_add_u32 v{vDD}, v58, 4, v47")
        for m in range(1, 4): q.add(f"v_add_u32 v{vDD+m}, {m*6144}, v{vDD}")
        q.add(f"s_mul_i32 s{sCNT}, s{sR64}, {2*112}", f"s_mul_i32 s{sRHO}, s{sW}, 14")
        for s in range(7):
            q.add(f"s_lshr_b32 s{sT0}, s{sXO+s}, 6", f"s_add_u32 s{sT0}, s{sT0}, s{sRHO}", f"s_add_u32 s{sHO+s}, s{sT0}, s{sCNT}", f"s_lshl_b32 s{sHO+s}, s{sHO+s}, 10",
                  f"s_and_b32 s{sT1}, s{sT0}, 0xfc", f"s_add_u32 s{sT0}, s{sT0}, s{sT1}", f"s_mul_i32 s{sDO+s}, s{sT0}, {16*896}")
        q.add(f"v_lshlrev_b32 v{vH[0]}, 4, {L}", f"v_add_u32 v{vH[1]}, {112*1024}, v{vH[0]}", f"v_add_u32 v{vH[2]}, {56*1024}, v{vH[0]}", f"v_add_u32 v{vH[3]}, {168*1024}, v{vH[0]}")
        q.add(f"s_lshl1_add_u32 s{sT0}, s{sTH}, s{sFH}", f"s_lshl2_add_u32 s{sT0}, s{sRT}, s{sT0}", f"s_xor_b32 s{sT1}, s{sT0}, 1",
              f"s_mul_i32 s{sT0}, s{sT0}, 112", f"s_mul_i32 s{sT1}, s{sT1}, 112", f"s_lshl2_add_u32 s{sCNT}, s{sFT}, s{sW}",
              f"s_add_u32 s{sHS[0]}, s{sT0}, s{sCNT}", f"s_add_u32 s{sHS[1]}, s{sT1}, s{sCNT}", f"s_xor_b32 s{sCNT}, s{sCNT}, 1",
              f"s_add_u32 s{sHS[2]}, s{sT0}, s{sCNT}", f"s_add_u32 s{sHS[3]}, s{sT1}, s{sCNT}")
        for k in range(4): q.add(f"s_lshl_b32 s{sHS[k]}, s{sHS[k]}, 10")
        q.add(f"s_mov_b32 s{sM1}, 0xaaaaaaaa", f"s_mov_b32 s{sM1+1}, 0xaaaaaaaa", f"s_mov_b32 s{sM2}, 0xcccccccc", f"s_mov_b32 s{sM2+1}, 0xcccccccc", f"s_mov_b32 s{sMH}, 0", f"s_mov_b32 s{sMH+1}, -1")
        q.add(f"s_lshl1_add_u32 s{sT0}, s{sRT}, s{sTH}", f"s_lshl_b32 s{sT0}, s{sT0}, 5", f"s_lshl1_add_u32 s{sT1}, s{sFT}, s{sFH}", f"s_add_u32 s{sT0}, s{sT0}, s{sT1}",
              f"s_lshl2_add_u32 s{sT0}, s{sT0}, {WS_FL}", f"v_mov_b32 v{vFLG}, {BIG}", f"v_writelane_b32 v{vFLG}, s{sT0}, 0",
              f"v_lshlrev_b32 v{vPD}, 2, {L}", f"v_cndmask_b32 v{vPD}, 0, v{vPD}, {sp(sMH)}",
              f"s_lshl1_add_u32 s{sT0}, s{sTH}, s{sFH}", f"s_lshl2_add_u32 s{sT0}, s{sRT}, s{sT0}", f"s_lshl_b32 s{sT0}, s{sT0}, 8", f"s_add_u32 s{sT0}, s{sT0}, {WS_ST}",
              f"s_cmp_eq_u32 s{sFT}, 0", f"s_cselect_b32 s{sT0}, s{sT0}, {BIG}", f"v_lshl_add_u32 v{vST}, {L}, 3, s{sT0}", f"v_mov_b32 v47, {BIG}",
              f"v_cndmask_b32 v{vST}, v{vST}, v47, {sp(sMH)}",
              f"s_lshl2_add_u32 s{sYO}, s2, s{sW}", f"s_lshl_b32 s{sYO}, s{sYO}, 11", f"s_add_u32 s{sYO}, s{sYO}, {WS_YT}")
        q.add(f"v_and_b32 v47, 15, {L}", "v_add_u32 v56, 1, v47", "v_and_b32 v57, 3, v56", f"v_mul_u32_u24 v57, {KCP}, v57", "v_and_b32 v56, 28, v56",
              "v_lshl_add_u32 v56, v46, 3, v56", f"v_lshl_add_u32 v{cvA}, v56, 1, v57",
              f"s_mul_i32 s{sT0}, s{sFH}, {KCH}", f"s_add_u32 s{sT0}, s{sT0}, {CB}", f"s_lshl_b32 s{sT1}, s{sTH}, 8", f"s_add_u32 s{sCNT}, s{sT0}, s{sT1}", f"v_add_u32 v{cvA}, s{sCNT}, v{cvA}",
              f"s_lshl3_add_u32 s{sT0}, s{sT1}, s{sT0}", f"s_add_u32 s{sT0}, s{sT0}, 32", f"v_add_u32 v{vKW}, s{sT0}, v{vH[0]}")
        q.add(f"s_mul_i32 s{sT0}, s{sFH}, {RCH}", f"s_add_u32 s{sT0}, s{sT0}, {RB}", f"v_lshl_add_u32 v{vRZ}, {L}, 3, s{sT0}",
              f"s_lshl3_add_u32 s{sCNT}, s{sT1}, s{sT0}", f"v_add_u32 v{vRW}, s{sCNT}, v{vH[0]}",
              f"s_add_u32 s{sT0}, s{sT0}, s{sT1}", f"s_add_u32 s{sT0}, s{sT0}, 480", "v_lshlrev_b32 v56, 4, v46", "v_lshlrev_b32 v57, 5, v47", "v_sub_u32 v56, v56, v57", f"v_add_u32 v{cvB}, s{sT0}, v56")
        q.add(f"s_lshl_b32 s{sT0}, s{sFH}, 4", f"s_lshr_b32 s{sDV}, s{sDV}, s{sT0}", f"s_and_b32 s{sDV}, s{sDV}, 0xffff", f"s_cmp_eq_u32 s{sTH}, 0", f"s_cselect_b32 s{sDV}, s{sDV}, 0",
              "v_lshl_add_u32 v56, v46, 3, v47", "v_sub_u32 v56, 15, v56", "v_and_b32 v57, 1, v56", "v_lshlrev_b32 v57, 4, v57", f"v_lshlrev_b32 v57, v57, s{sDV}", "v_ashrrev_i32 v56, 1, v56")
        for e in range(4): q.add(f"v_cmp_eq_u32 vcc, {e}, v56", "s_nop 1", f"v_cndmask_b32 v{cD+e}, 0, v57, vcc")
        q.add(f"v_bfe_u32 v47, {L}, 3, 2", "v_lshl_add_u32 v56, v45, 1, v47", "v_subrev_u32 v56, 16, v56", f"s_lshl_b32 s{sT0}, s2, 13", "v_lshlrev_b32 v57, 12, v48",
              f"v_add_u32 v57, s{sT0}, v57", f"v_mov_b32 v58, {BIG}", "v_lshl_add_u32 v57, v56, 1, v57", "v_cmp_gt_i32 vcc, 0, v56", "v_add_u32 v59, 2, v57",
              f"v_mul_u32_u24 v47, {KCP}, v47", "v_cndmask_b32 v57, v57, v58, vcc", "v_cmp_gt_i32 vcc, -1, v56", f"v_mul_u32_u24 v{vFX}, {KCH}, v48", "v_lshl_add_u32 v47, v45, 2, v47",
              "v_cndmask_b32 v59, v59, v58, vcc", f"v_add_u32 v{vFX}, v{vFX}, v47", f"v_add_u32 v{vFX}, {CB}, v{vFX}",
              f"buffer_load_ushort v{vFD}, v57, {srd(rKF)}, 0 offen", f"buffer_load_ushort v84, v59, {srd(rKF)}, 0 offen")
        q.add(f"v_lshlrev_b32 v47, 3, {L}", f"s_lshl_b32 s{sT0}, s{sW}, 9", f"v_add_u32 v47, s{sT0}, v47", f"v_add_u32 v{vX1o}, {XS1}, v47", f"v_add_u32 v{vX2}, {XS2}, v47")
        for r in (vAC[0], vAC[1], vBC[0], vBC[1]): q.add(f"v_mov_b32 v{r+2}, 0", f"v_mov_b32 v{r+3}, 0")

        def xread(s, st, b):
            base = 2 * (s & 3) * SLOT
            return Ins(f"ds_read_b128 {a_(aXF(s,st,b),4)}, v{vXR(base>>16,b,st)} offset:{base & 0xffff}")
        def wread(slot, st, al, buf):
            base = slot * SLOT + st * 2048
            return [Ins(f"ds_read_b64_tr_b16 {v(vWF(buf,al)+2*e,2)}, v{vWR(base>>16,al)} offset:{(base & 0xffff) + e*512}") for e in range(2)]
        A.wait(vm=[stA[0]]); A("s_barrier")
        self.stamp(A, "a0")
        for it in [xread(0, 0, 0)] + wread(1, 0, 0, 0) + [xread(0, 0, 1)] + wread(1, 0, 1, 0): A.add(it)
        cur = []
        stB = {}; stD = {}; stE = {}
        def emit_group(g):
            c_ = 0
            for i, it in enumerate(g):
                if isinstance(it, Ins) and it.is_dma and i and ('s', 'm0') in g[i - 1].wr: c_ += 4 - self.FQ.take(A, 4)
                A.add(it); c_ += cost(it)
            return c_
        def vtake(hi_only=False):
            if VL.q and len(VL.q[0]) == 1 and isinstance(VL.q[0][0], Ins) and VL.q[0][0].is_dma: return emit_group(VL.q.pop(0))
            if V.q: return emit_group(V.q.pop(0))
            if VL.q and not hi_only: return emit_group(VL.q.pop(0))
            return 0
        self.FQ = FQ
        kstep = 0
        for c in range(7):
            for st in range(4):
                buf = kstep & 1; nb = buf ^ 1
                first = (kstep == 0)
                def M(al, b):
                    acc = v(vACC(0, al, b), 16)
                    return f"{MF32} {acc}, {v(vWF(buf,al),4)}, {a_(aXF(c,st,b),4)}, {'0' if first else acc}"
                if st < 3: nx = [xread(c, st + 1, 0), xread(c, st + 1, 1)]; sl, ns = 2 * (c & 3) + 1, st + 1
                elif c < 6: nx = [xread(c + 1, 0, 0), xread(c + 1, 0, 1)]; sl, ns = 2 * ((c + 1) & 3) + 1, 0
                else: nx = []; sl, ns = BSLOT[0], 0
                nw0 = wread(sl, ns, 0, nb); nw1 = wread(sl, ns, 1, nb)
                if st == 0 and c > 0: self.stamp(A, f"A.{c}")
                A.wait(lgkm=cur); cur = nx + nw0 + nw1
                A(M(0, 0))
                if st == 3:
                    A.wait(vm=[stA[c + 1] if c < 6 else stB[0]]); A("s_barrier")
                    if c < 3: stA[c + 4] = V.add(dma_x(c + 4) + dma_w(2 * (c & 3) + 1, c + 4))
                    else:
                        for b_ in ([0, 1], [2, 3], [4, 5], [])[c - 3]:
                            stB[b_] = V.add([f"s_add_u32 s{sWO+b_}, s{sWO+b_}, 128"] + dma_w(BSLOT[b_], b_))
                        if c == 5: FQ.flush(A)
                        for s in {5: [0, 1], 6: [2]}.get(c, []): stD[s] = V.add(dma_d(DSA[s], s))
                for it in nx[:1] + nw0: A.add(it)
                FQ.take(A, 24 - 4 * (len(nx[:1]) + 2) - vtake())
                A(M(0, 1))
                for it in nx[1:] + nw1: A.add(it)
                FQ.take(A, 24 - 4 * (len(nx[1:]) + 2))
                A(M(1, 0)); FQ.take(A, 24 - vtake())
                A(M(1, 1)); FQ.take(A, 24)
                x0 = aXF(c, st, 0); w0 = vWF(buf, 0)
                A(f"{MF4} {v(vSQ,4)}, {a_(x0,2)}, {a_(x0,2)}, {'0' if first else v(vSQ,4)}")
                A(f"{MF4} {v(vSQ2,4)}, {a_(x0+2,2)}, {a_(x0+2,2)}, {'0' if first else v(vSQ2,4)}")
                A(f"{MF16} {v(vSUM,4)}, {v(vSEL,4)}, {a_(x0,4)}, {'0' if first else v(vSUM,4)}")
                if len(V.q) > o.v3: vtake()
                A(f"{MF16} {v(vSA,4)}, {v(vSEL,4)}, {v(w0,4)}, {'0' if first else v(vSA,4)}")
                kstep += 1
        self.stamp(A, "aend")

        VL.flush(A)
        def row_consts(q, b, d):
            q.add(f"v_rcp_f32 v{vTMP}, v{d}", f"v_mul_f32 v{vIR+b}, v{d}, v{d}", f"v_mul_f32 v{vA0+b}, {fl(C0)}, v{vTMP}",
                  f"v_mul_f32 v{vA1+b}, v{vTMP}, v{vTMP}", f"v_mul_f32 v{vA1+b}, v{vA1+b}, v{vTMP}", f"v_mul_f32 v{vA1+b}, {fl(C1)}, v{vA1+b}")
        def split3(q, src, dst, t):
            q.add(f"v_cndmask_b32 v{src}, v{src}, 0, {sp(sMH)}",
                  f"v_cvt_pk_bf16_f32 v{t}, v{src}, v{src}", f"v_and_b32 v{t+1}, 0xffff0000, v{t}", f"v_sub_f32 v{src}, v{src}, v{t+1}",
                  f"v_cvt_pk_bf16_f32 v{t+2}, v{src}, v{src}", f"v_and_b32 v{t+1}, 0xffff0000, v{t+2}", f"v_sub_f32 v{src}, v{src}, v{t+1}",
                  f"v_and_b32 v{t}, 0xffff, v{t}", f"v_or_b32 v{dst}, v{t}, v{t+1}", f"v_cvt_pk_bf16_f32 v{dst+1}, v{src}, 0")
        q = FQ; T = 68
        q.add(f"v_lshl_or_b32 v{vFD}, v84, 16, v{vFD}", Skip(1))
        for e in range(4): q.add(f"v_add_f32 v{vSQ+e}, v{vSQ+e}, v{vSQ2+e}")
        q.add(f"v_cndmask_b32 v{T}, v{vSQ}, v{vSQ+1}, {sp(sM1)}", f"v_cndmask_b32 v{T+1}, v{vSQ+2}, v{vSQ+3}, {sp(sM1)}", f"v_cndmask_b32 v{T}, v{T}, v{T+1}, {sp(sM2)}",
              f"v_mul_f32 v{T+2}, {fl(-1.0/D)}, v{vSUM}", f"v_mov_b32 v{T+1}, v{T}", f"v_cvt_pk_bf16_f32 v{vBC[0]}, v{T+2}, v{T+2}", f"v_mul_f32 v{T+2}, v{T+2}, v{T+2}",
              f"v_permlane32_swap_b32 v{T}, v{T+1}", f"v_add_f32 v{T}, v{T}, v{T+1}", f"v_mov_b32 v{vBC[0]+1}, v{vBC[0]}", f"v_mov_b32 v84, v{vBC[0]}",
              f"v_mul_f32 v{T}, {fl(1.0/D)}, v{T}", f"v_sub_f32 v{T}, v{T}, v{T+2}", f"v_max_f32 v{T}, 0, v{T}",
              f"v_cvt_pk_bf16_f32 v{T}, v{T}, v{T}", f"v_and_b32 v{T}, 0xffff0000, v{T}", f"v_add_f32 v{T}, {fl(1e-5)}, v{T}", f"v_cvt_pk_bf16_f32 v{T}, v{T}, v{T}",
              f"v_and_b32 v{T}, 0xffff0000, v{T}", f"v_sqrt_f32 v{T}, v{T}")
        split3(q, vSA, vAC[0], T + 4)
        q.add(f"v_cvt_pk_bf16_f32 v{T}, v{T}, v{T}", f"v_and_b32 v85, 0xffff0000, v{T}",
              f"ds_write_b64 v{vX1o}, v[84:85]", f"ds_write_b64 v{vX1o}, {v(vAC[0],2)} offset:2048")
        row_consts(q, 0, 85)
        q.add(f"v_and_b32 v{T}, 0xffff0000, v84", f"v_mov_b32 v{T+1}, v{vTMP}")
        st_stats = q.add(f"buffer_store_dwordx2 {v(T,2)}, v{vST}, {srd(rWS)}, 0 offen sc1")
        q.add(f"v_min_u32 v{vPB}, 27, {L}", f"s_lshl_b32 s{sT0}, s{sR64}, 7", f"s_add_u32 s{sT0}, s{sT0}, {WS_FL}", f"v_lshl_add_u32 v{vPB}, v{vPB}, 2, s{sT0}")
        q.add(f"v_xor_b32 v{vX1p}, 1024, v{vX1o}", f"v_xor_b32 v{vX1o}, 512, v{vX1o}")
        ld_arr, chk_arr = self.poll_items(f"buffer_load_dword v6, v{vPD}, {srd(rDBG)}, 0 offen sc1", 6, 1, 1)

        def geglu(q, g, al, b, ob, pk=False):
            acc = vACC(g, al, b); out = vO[ob]
            def bc(r): return (v(r & ~1, 2), r & 1)
            for hf in range(2):
                G = acc + 8 * hf; U = G + 4
                if not pk:
                    for e in range(4): q.add(f"v_mul_f32 v{vT+e}, v{G+e}, v{G+e}")
                    for e in range(4): q.add(f"v_fma_f32 v{vT+e}, v{vT+e}, v{vA1+b}, v{vA0+b}")
                    for e in range(4): q.add(f"v_mul_f32 v{vT+e}, v{G+e}, v{vT+e}")
                    for e in range(4): q.add(f"v_exp_f32 v{vT+e}, v{vT+e}", f"v_mul_f32 v{vN+e}, v{G+e}, v{U+e}")
                    for e in range(4): q.add(f"v_fma_f32 v{vT+e}, v{vT+e}, v{vIR+b}, v{vIR+b}")
                    for e in range(4): q.add(f"v_rcp_f32 v{vT+e}, v{vT+e}")
                    for e in range(4): q.add(f"v_mul_f32 v{vN+e}, v{vN+e}, v{vT+e}")
                else:
                    if hf == 1: continue
                    sel3 = f"op_sel:[0,{b},{b}] op_sel_hi:[1,{b},{b}]"
                    pT, pN = 96, 104
                    E = [(pT + 4 * h_ + e, pN + 4 * h_ + e, acc + 8 * h_ + e) for h_ in range(2) for e in (0, 2)]
                    for t_, n_, g_ in E: q.add(f"v_pk_mul_f32 {v(t_,2)}, {v(g_,2)}, {v(g_,2)}")
                    for t_, n_, g_ in E: q.add(f"v_pk_fma_f32 {v(t_,2)}, {v(t_,2)}, {v(vA1,2)}, {v(vA0,2)} {sel3}")
                    for t_, n_, g_ in E: q.add(f"v_pk_mul_f32 {v(t_,2)}, {v(g_,2)}, {v(t_,2)}")
                    for t_, n_, g_ in E: q.add(f"v_pk_mul_f32 {v(n_,2)}, {v(g_,2)}, {v(g_+4,2)}")
                    for e in range(8): q.add(f"v_exp_f32 v{pT+e}, v{pT+e}")
                    for t_, n_, g_ in E: q.add(f"v_pk_fma_f32 {v(t_,2)}, {v(t_,2)}, {v(vIR,2)}, {v(vIR,2)} {sel3}")
                    for e in range(8): q.add(f"v_rcp_f32 v{pT+e}, v{pT+e}")
                    for t_, n_, g_ in E: q.add(f"v_pk_mul_f32 {v(n_,2)}, {v(n_,2)}, {v(t_,2)}")
                    for e in range(4): q.add(f"v_cvt_pk_bf16_f32 v{out+e}, v{pN+2*e}, v{pN+2*e+1}")
                    continue
                for e in range(2): q.add(f"v_cvt_pk_bf16_f32 v{out+2*hf+e}, v{vN+2*e}, v{vN+2*e+1}")
            return q.add(f"buffer_store_dwordx4 {v(out,4)}, v{vH[2*g]}, {srd(rWS)}, s{sHS[2*al+b]} offen sc1")
        def corr(g, al, b):
            acc = v(vACC(g, al, b), 16)
            return f"{MF32} {acc}, {v(vAC[al],4)}, {v(vBC[b],4)}, {acc}"
        def dread(slot, sg, dh, dst):
            base = slot * SLOT + sg * 2048
            f = a_ if dst[0] == 'a' else v
            return [Ins(f"ds_read_b64_tr_b16 {f(dst[1]+2*e,2)}, v{vDR(base>>16,dh)} offset:{(base & 0xffff) + e*512}") for e in range(2)]
        mvrd = {}
        def d_move(s):
            mvrd[s] = [it for sg in range(2) for dh in range(2) for it in dread(DSA[s], sg, dh, ('a', aWD(s, sg, dh)))]
            return [Wait(vm=[stD[s]])] + mvrd[s]
        def e_issue(vq, s, after_move):
            stE[s] = vq.add(([Wait(lgkm=mvrd[s])] if after_move else []) + [f"s_add_u32 s{sDO+s}, s{sDO+s}, {64*896}"] + dma_d(DSB[s], s))
        kA, kB, kC, kO = [128, 136], [132, 140], [144, 145], [148, 152]
        hstores = []
        MV = Fill()
        BARS = {0: [1, 2], 2: [3, 4], 4: [5], 5: [6]}
        rld = [Ins(f"buffer_load_dwordx4 {a_(224+4*u,4)}, v{vH[0]}, {srd(rWS)}, s{sRHO} offen offset:{u*1024} sc1") for u in range(2)]
        def arrived(): return list(chk_arr) + [f"s_add_u32 s{sRHO}, s{sRHO}, {WS_KVR}"] + rld
        for c in range(7):
            for st in range(4):
                buf = kstep & 1; nb = buf ^ 1
                first = (c == 0 and st == 0); last = (c == 6 and st == 3)
                def M(al, b):
                    acc = v(vACC(1, al, b), 16)
                    return f"{MF32} {acc}, {v(vWF(buf,al),4)}, {a_(aXF(c,st,b),4)}, {'0' if first else acc}"
                if st < 3: nw = wread(BSLOT[c], st + 1, 0, nb) + wread(BSLOT[c], st + 1, 1, nb)
                elif c < 6: nw = wread(BSLOT[c + 1], 0, 0, nb) + wread(BSLOT[c + 1], 0, 1, nb)
                else: nw = []
                smf = f"{MF16} {v(vSB0,4)}, {v(vSEL,4)}, {v(vWF(buf,0),4)}, {'0' if first else v(vSB0,4)}"
                if st == 0 and c > 0: self.stamp(A, f"B.{c}")
                if st == (0 if c == 5 else 1) and c >= 1: MV.add(*d_move(c - 1))
                if st == 0 and c in (2, 3): e_issue(VL, c - 2, True)
                if c == o.pollarr // 4 and st == o.pollarr % 4: V.add([ld_arr])
                if c == 6 and st == 0 and o.arrchk == 0: V.add(arrived())
                bar = (st == 3 and c in BARS)
                if bar:
                    if c == 0: FQ.flush(A)
                    if c == 5: MV.flush(A)
                A.wait(lgkm=cur, alllgkm=(bar and c in (0, 5))); cur = nw
                if last: A(smf)
                if c == 1 and st == 1:
                    FQ.flush(A)
                    for al in range(2):
                        for b in range(2): A(corr(0, al, b)); MV.take(A, 24 - (vtake() if b else 0))
                    kf = [f"s_lshl2_add_u32 s{sRHO}, s2, s{sW}", f"s_lshl_b32 s{sRHO}, s{sRHO}, 11"]
                    for u in range(2):
                        kf += [f"buffer_load_dwordx4 {v(kA[u],4)}, v{vH[0]}, {srd(rKF)}, s{sRHO} offen offset:{u*1024}",
                               f"buffer_load_dwordx4 {v(kB[u],4)}, v{vH[0]}, {srd(rKF)}, s{sRHO} offen offset:{u*1024+4}",
                               f"buffer_load_dword v{kC[u]}, v{vH[0]}, {srd(rKF)}, s{sRHO} offen offset:{u*1024+20}"]
                    kf = [Ins(t) for t in kf]
                    for al in range(2):
                        for b in range(2):
                            hstores.append(geglu(FQ, 0, al, b, b))
                            if al == 0 and b == 1: FQ.add(Call(lambda: V.add(kf)))
                A(M(0, 0))
                if bar:
                    A.wait(vm=[stB[b_] for b_ in BARS[c]]); A("s_barrier")
                    if c == 0:
                        A(f"ds_read_b64 v[84:85], v{vX1p}"); A(f"ds_read_b64 {v(vAC[1],2)}, v{vX1o} offset:2048")
                        FQ.add(Skip(3), f"v_mov_b32 v{vBC[1]}, v84", f"v_mov_b32 v{vBC[1]+1}, v84"); row_consts(FQ, 1, 85)
                    if c == 2: stB[6] = V.add([f"s_add_u32 s{sWO+6}, s{sWO+6}, 128"] + dma_w(BSLOT[6], 6))
                    for s in {0: [3], 2: [4, 5], 4: [6]}.get(c, []): stD[s] = V.add(dma_d(DSA[s], s))
                    if c in (4, 5): e_issue(VL, c - 2, False)
                    if c == 5:
                        FQ.add(Wait(vm=[kf[-1]]))
                        for u in range(2):
                            a0, b0, c0 = kA[u], kB[u], kC[u]
                            FQ.add(f"ds_write_b128 v{vKW}, {v(a0,4)} offset:{u*1024}")
                            for e, (hi, lo) in enumerate([(a0+1, a0), (a0+2, a0+1), (a0+3, a0+2), (b0+3, a0+3)]): FQ.add(f"v_alignbit_b32 v{kO[0]+e}, v{hi}, v{lo}, 16")
                            FQ.add(f"ds_write_b128 v{vKW}, {v(b0,4)} offset:{u*1024+2*KCP}")
                            for e, (hi, lo) in enumerate([(b0+1, b0), (b0+2, b0+1), (b0+3, b0+2), (c0, b0+3)]): FQ.add(f"v_alignbit_b32 v{kO[1]+e}, v{hi}, v{lo}, 16")
                            FQ.add(f"ds_write_b128 v{vKW}, {v(kO[0],4)} offset:{u*1024+KCP}", Skip(1), f"ds_write_b128 v{vKW}, {v(kO[1],4)} offset:{u*1024+3*KCP}")
                        FQ.add("v_mov_b32 v84, 0", "v_mov_b32 v85, 0", f"ds_write_b32 v{vFX}, v{vFD}", f"ds_write_b64 v{vRZ}, v[84:85] offset:4096")
                if last:
                    pre = Fill(); pre.add(Skip(1)); split3(pre, vSB0, vAC[0], vSQ); xw = pre.add(f"ds_write_b64 v{vX2}, {v(vAC[0],2)}"); pre.add(f"v_xor_b32 v{vX2}, 512, v{vX2}")
                    FQ.q = pre.q + FQ.q
                for it in nw: A.add(it)
                FQ.take(A, o.bud - 4 * len(nw))
                A(M(0, 1)); FQ.take(A, MV.take(A, 8) - 8 + o.bud - vtake())
                A(M(1, 0)); FQ.take(A, MV.take(A, 12) - 12 + o.bud)
                A(M(1, 1)); FQ.take(A, o.bud - vtake())
                if not last: A(smf); FQ.take(A, 8)
                kstep += 1
        self.stamp(A, "bend")
        while any(it is xw for it in FQ.q): FQ.take(A, 4)
        A.wait(lgkm=[xw]); A(corr(1, 0, 0)); A("s_barrier"); A(f"ds_read_b64 {v(vAC[1],2)}, v{vX2}"); A(corr(1, 0, 1))
        MV.flush(A); FQ.flush(A)
        e_issue(VL, 5, True); e_issue(VL, 4, False)
        for it in d_move(6): A.add(it)
        e_issue(VL, 6, True)
        HA = {}; HB = {}
        for s_ in range(7):
            HA[s_] = [(a_(aHA(s_,sg,tg),4), f"buffer_load_dwordx4 {a_(aHA(s_,sg,tg),4)}, v{vH[tg]}, {srd(rWS)}, s{sHO+s_} offen offset:{sg*1024} sc1") for sg in range(2) for tg in range(2)]
            HB[s_] = [(rHB(s_,sg,tg), f"buffer_load_dwordx4 {rHB(s_,sg,tg)}, v{vH[2+tg]}, {srd(rWS)}, s{sHO+s_} offen offset:{sg*1024} sc1") for sg in range(2) for tg in range(2)]
        ldB1, chkB1 = self.poll_items(f"buffer_load_dword v2, v{vPB}, {srd(rWS)}, 0 offen sc1", 2, 1, 1, 3)
        ldB2, chkB2 = self.poll_items(f"buffer_load_dword v4, v{vPB}, {srd(rWS)}, 0 offen sc1", 4, 1, 2, 3)
        hst = []
        cACC, cA, cB = 128, 160, 192
        X = Fill()
        def run_geglu(al, b):
            g = Fill(); hst.append(geglu(g, 1, al, b, b, pk=o.pk))
            while g.q: g.take(A, 28); X.take(A, 8); g.take(A, 28); (vtake() or X.take(A, 8))
        vtake(); vtake()
        self.stamp(A, "P.0")
        run_geglu(0, 0)
        self.stamp(A, "P.1")
        A(corr(1, 1, 0)); A(corr(1, 1, 1))
        if o.arrchk == 1: V.add(arrived())
        sig1 = [Wait(vm=hstores + [st_stats]), f"v_mov_b32 v{vTMP}, 1", f"buffer_store_dword v{vTMP}, v{vFLG}, {srd(rWS)}, 0 offen sc1"]
        V.add(sig1)
        run_geglu(0, 1)
        self.stamp(A, "P.2")
        rwr = [f"ds_write_b128 v{vRW}, {a_(224+4*u,4)} offset:{u*1024}" for u in range(2)]
        if o.arrchk == 0: V.flush(A); [A(t) for t in rwr]
        run_geglu(1, 0); self.stamp(A, "P.4")
        def cra(a, jj): return [Ins(f"ds_read_b64 {v(cA+4*a+2*e,2)}, v{cvA} offset:{512*a+64*jj+8*e}") for e in range(2)]
        def crb(c, jj): return [Ins(f"ds_read_b128 {v(cB+4*c,4)}, v{cvB} offset:{512*(7-c)+64*jj}")]
        rb = {}; ra = {}
        def conv_first(q):
            for c in range(7, -1, -1): rb[c] = q.add(crb(c, 0)[0])
            for a in range(8):
                for it in cra(a, 0): ra[a] = q.add(it)
        if o.arrchk == 0:
            A.wait(alllgkm=True); A("s_barrier"); conv_first(X)
            run_geglu(1, 1); X.flush(A); self.stamp(A, "P.5")
        else:
            run_geglu(1, 1); self.stamp(A, "P.5")
            V.flush(A); [A(t) for t in rwr]
            A.wait(alllgkm=True); A("s_barrier"); conv_first(A)
        self.stamp(A, "conv0")
        FQ = Fill(); self.FQ = FQ
        ld_a2, chk_a2 = self.poll_items(f"buffer_load_dword v3, v{vPD}, {srd(rDBG)}, 0 offen sc1", 3, 1, 2)
        gap = 0
        for c in range(7, -1, -1):
            if c in (7, 3): A.wait(lgkm=[rb[c - 3]])
            A(f"{MF16} {v(cACC+4*c,4)}, {v(cD,4)}, {v(cB+4*c,4)}, 0")
        for jj in range(4):
            pos = 0
            self.stamp(A, f"C.{jj}")
            for a in range(8):
                for c in range(7 - a, -1, -1):
                    if jj == 0 and pos == 0: A.wait(lgkm=[ra[7]])
                    if jj > 0:
                        if pos == 0: A.wait(lgkm=[rb[3]])
                        if pos == 5: A.wait(lgkm=[rb[1]])
                        if pos == 7: A.wait(lgkm=[ra[7]])
                    gi = jj * 36 + pos
                    if gi == o.pollb1: V.add([ldB1])
                    if gi == o.chkb1: VL.add(list(chkB1) + [t for s_ in range(7) for _, t in HA[s_]])
                    if gi == o.sig2: V.add([Wait(vm=hst), f"v_mov_b32 v{vTMP}, 2", f"buffer_store_dword v{vTMP}, v{vFLG}, {srd(rWS)}, 0 offen sc1"])
                    if gi == o.pollb2: V.add([ldB2])
                    if gi == o.pollb1: V.add([ld_a2])
                    if gi == 130: FQ.add(Wait(vm=[ld_a2]), *chk_a2)
                    acc = v(cACC + 4 * (a + c), 4)
                    A(f"{MF16} {acc}, {v(cA+4*a,4)}, {v(cB+4*c,4)}, {acc}")
                    n = 0
                    if jj < 3:
                        if c == 7 - a: rb[c] = A.add(crb(c, jj + 1)[0]); n += 1
                        if c == 0:
                            for it in cra(a, jj + 1): ra[a] = A.add(it); n += 1
                    gap += 1
                    if gap >= o.cgap and n == 0:
                        if vtake(): gap = 0
                        else: FQ.take(A, 8)
                    elif n == 0: FQ.take(A, 8)
                    pos += 1
        FQ.flush(A)
        self.stamp(A, "conv1")
        def fACC(tg, dh): return 160 + (tg * 2 + dh) * 16
        cS, cR = 224, 6
        FQ = Fill()
        FQ.add(f"s_add_u32 s{sT0}, s{sLW}, {CB}", f"v_add_u32 v{cR}, s{sT0}, v{vH[0]}", f"v_xor_b32 v{cR+1}, 4096, v{cR}", f"s_cmp_eq_u32 s{sTH}, 1", f"s_cselect_b64 {sp(sM1)}, -1, 0", "s_barrier")
        for r in range(16):
            FQ.add(f"v_cndmask_b32 v{cS+r}, v{cACC+16+r}, v{cACC+r}, {sp(sM1)}", f"v_cndmask_b32 v{cACC+r}, v{cACC+r}, v{cACC+16+r}, {sp(sM1)}")
            if r % 4 == 3: FQ.add(f"ds_write_b128 v{cR}, {v(cS+r-3,4)} offset:{(r//4)*1024}")
        FQ.add(f"v_and_b32 v{cR+2}, 15, {L}", f"v_lshrrev_b32 v{cR+3}, 4, {L}", f"v_lshlrev_b32 v{cR+3}, 3, v{cR+3}", f"v_lshl_add_u32 v{cR+2}, v{cR+2}, 5, v{cR+3}",
               Skip(2), Wait(alllgkm=True), "s_barrier")
        for k in range(4): FQ.add(f"ds_read_b128 {v(cS+4*k,4)}, v{cR+1} offset:{k*1024}")
        FQ.add(Skip(3))
        yst = []
        for k in range(4):
            for r in range(4): FQ.add(f"v_add_f32 v{cACC+4*k+r}, v{cACC+4*k+r}, v{cS+4*k+r}")
            FQ.add(f"v_cvt_pk_bf16_f32 v{cACC+16+2*k}, v{cACC+4*k}, v{cACC+4*k+1}", f"v_cvt_pk_bf16_f32 v{cACC+16+2*k+1}, v{cACC+4*k+2}, v{cACC+4*k+3}")
            FQ.add(f"v_min_u32 v{cACC+16+2*k}, -2, v{cACC+16+2*k}")
            yst.append(FQ.add(f"buffer_store_dwordx2 {v(cACC+16+2*k,2)}, v{cR+2}, {srd(rWS)}, s{sYO} offen offset:{k*512} sc1"))
        eX, eST, eY, eP, eXF, eOF = 128, 136, 224, 140, 14, 30
        eR, eC, eA, eB = 232, 233, 234, 235
        EQ = Fill()
        EQ.add(f"v_lshrrev_b32 v{eR}, 3, {L}", f"v_and_b32 v{eC}, 7, {L}",
               f"s_lshl3_add_u32 s{sT0}, s{sR64}, s{sW}", f"s_lshl_b32 s{sT0}, s{sT0}, 3", f"v_add_u32 v{eA}, s{sT0}, v{eR}",
               f"v_mul_u32_u24 v{eOF}, 896, v{eA}", f"s_lshl_b32 s{sT1}, s{sDT}, 7", f"v_lshl_add_u32 v{eOF}, v{eC}, 4, v{eOF}", f"v_add_u32 v{eOF}, s{sT1}, v{eOF}",
               f"v_add_u32 v{eOF+1}, {32*896}, v{eOF}", f"v_lshlrev_b32 v{eA}, 3, v{eA}", f"v_add_u32 v{eA}, {WS_ST}, v{eA}")
        stl = [f"buffer_load_dwordx2 {v(eST+2*tg,2)}, v{eA}, {srd(rWS)}, 0 offen offset:{tg*256} sc1" for tg in range(2)]
        EQ.add(Call(lambda: V.add(stl + [f"buffer_load_dwordx4 {v(eX+4*tg,4)}, v{eOF+tg}, {srd(rX)}, 0 offen" for tg in range(2)])))
        EQ.add(f"s_lshl2_add_u32 s{sRHO}, s{sDT}, s{sW}", f"s_lshl_b32 s{sRHO}, s{sRHO}, 16", f"s_lshl_b32 s{sT1}, s{sR64}, 7", f"s_add_u32 s{sRHO}, s{sRHO}, s{sT1}", f"s_add_u32 s{sRHO}, s{sRHO}, {WS_YT}",
               f"v_lshlrev_b32 v{eB}, 12, v{eR}", f"v_lshl_add_u32 v{eB}, v{eC}, 4, v{eB}", f"v_add_u32 v{eB+1}, 32768, v{eB}")
        yl = [f"buffer_load_dwordx4 {v(eY+4*u,4)}, v{eB+u}, {srd(rWS)}, s{sRHO} offen sc1" for u in range(2)]
        EQ.add(f"v_and_b32 v10, 31, {L}", f"v_lshrrev_b32 v11, 5, {L}", "v_lshlrev_b32 v11, 2, v11", f"v_xor_b32 v11, v11, v{eC}", "v_lshlrev_b32 v11, 4, v11", "v_lshl_add_u32 v11, v10, 8, v11",
               f"s_lshl_b32 s{sT0}, s{sW}, 13", f"v_add_u32 v10, s{sT0}, v11")
        for j in range(1, 4): EQ.add(f"v_xor_b32 v{10+j}, {16*j}, v10")
        EQ.add(f"s_lshl_b32 s{sT0}, s{sW}, 11", f"v_lshlrev_b32 v32, 1, v{eC}", f"v_xor_b32 v32, v32, v{eR}", "v_lshlrev_b32 v32, 4, v32", f"v_lshl_add_u32 v32, v{eR}, 8, v32",
               f"v_add_u32 v32, s{sT0}, v32", "v_xor_b32 v33, 16, v32")
        YB = CB + 32768
        self.FQ = FQ
        pr = 44
        LOG2E = 1.4426950408889634
        def pwrite(tg): return [Ins(f"ds_write_b128 v{10+j}, {v(fACC(tg,dh)+4*j,4)} offset:{tg*32768+dh*128}") for dh in range(2) for j in range(4)]
        def pread(tg, b): return [Ins(f"ds_read_b128 {v(b+ww*8+4*j,4)}, v{32+j} offset:{tg*32768+ww*8192}") for ww in range(4) for j in range(2)]
        def finish(q, tg, b, pk):
            if pk:
                for e in range(0, 8, 2): q.add(f"v_pk_add_f32 {v(b+e,2)}, {v(b+e,2)}, {v(b+8+e,2)}")
                for e in range(0, 8, 2): q.add(f"v_pk_add_f32 {v(b+16+e,2)}, {v(b+16+e,2)}, {v(b+24+e,2)}")
                for e in range(0, 8, 2): q.add(f"v_pk_add_f32 {v(b+e,2)}, {v(b+e,2)}, {v(b+16+e,2)}")
            else:
                for e in range(8): q.add(f"v_add_f32 v{b+e}, v{b+e}, v{b+8+e}")
                for e in range(8): q.add(f"v_add_f32 v{b+16+e}, v{b+16+e}, v{b+24+e}")
                for e in range(8): q.add(f"v_add_f32 v{b+e}, v{b+e}, v{b+16+e}")
            for e in range(8): q.add(f"v_mul_f32 v{b+8+e}, {fl(-LOG2E)}, v{b+e}")
            for e in range(8): q.add(f"v_exp_f32 v{b+8+e}, v{b+8+e}")
            if pk:
                for e in range(0, 8, 2): q.add(f"v_pk_mul_f32 {v(b+e,2)}, {v(b+e,2)}, {v(eP+8*tg+e,2)}")
                for e in range(0, 8, 2): q.add(f"v_pk_add_f32 {v(b+8+e,2)}, {v(b+8+e,2)}, 1.0 op_sel_hi:[1,0]")
            else:
                for e in range(8): q.add(f"v_mul_f32 v{b+e}, v{b+e}, v{eP+8*tg+e}")
                for e in range(8): q.add(f"v_add_f32 v{b+8+e}, 1.0, v{b+8+e}")
            for e in range(8): q.add(f"v_rcp_f32 v{b+8+e}, v{b+8+e}")
            if pk:
                for e in range(0, 8, 2): q.add(f"v_pk_fma_f32 {v(b+e,2)}, {v(b+e,2)}, {v(b+8+e,2)}, {v(eXF+8*tg+e,2)}")
            else:
                for e in range(8): q.add(f"v_fma_f32 v{b+e}, v{b+e}, v{b+8+e}, v{eXF+8*tg+e}")
            for e in range(4): q.add(f"v_cvt_pk_bf16_f32 v{b+16+e}, v{b+2*e}, v{b+2*e+1}")
            q.add(f"buffer_store_dwordx4 {v(b+16,4)}, v{eOF+tg}, {srd(rOUT)}, 0 offen")
        ML = [(0, s, sg, tg, dh) for s in range(7) for sg in range(2) for (tg, dh) in ((0, 0), (1, 0), (0, 1), (1, 1))]
        ML += [(1, s, sg, tg, dh) for tg in range(2) for s in range(7) for sg in range(2) for dh in range(2)]
        hbl = [HB[s][sg * 2 + tg][1] for tg in range(2) for s in range(7) for sg in range(2)]
        MV = Fill(); emv = []
        def issued(t): return any(isinstance(x, Ins) and x.text == t for x in A.items)
        for m, (g, s, sg, tg, dh) in enumerate(ML):
            if m and m % 8 == 0: self.stamp(A, f"F.{m//4}")
            if m == 0: FQ.q += EQ.q
            if m % 8 == 0 and 8 <= m <= 56:
                e = m // 8 - 1
                r = [it for sg_ in range(2) for dh_ in range(2) for it in dread(DSB[e], sg_, dh_, ('a', aWD(e, sg_, dh_)))]
                MV.add(Wait(vm=[stE[e]]), *r); emv += r
            if m == 4 * (o.pollb2 - 144): V.add([ldB2])
            if m == 4 * o.chkb2: VL.add(list(chkB2) + hbl)
            if m == 4 * o.yld: V.add(yl)
            if m == 4 * o.xpre:
                for tg_ in range(2):
                    for e in range(4):
                        FQ.add(f"v_lshlrev_b32 v{eXF+8*tg_+2*e}, 16, v{eX+4*tg_+e}", f"v_and_b32 v{eXF+8*tg_+2*e+1}, 0xffff0000, v{eX+4*tg_+e}")
                    for e in range(8): FQ.add(f"v_add_f32 v{eP+8*tg_+e}, v{eXF+8*tg_+e}, v{eST+2*tg_}")
                    for e in range(8): FQ.add(f"v_mul_f32 v{eP+8*tg_+e}, v{eP+8*tg_+e}, v{eST+2*tg_+1}")
                FQ.add(f"s_lshl_b32 s{sT0}, s{sW}, 1", f"v_xor_b32 v{eA}, s{sT0}, v{eC}", f"v_lshlrev_b32 v{eA}, 4, v{eA}", f"v_lshl_add_u32 v{eA}, v{eR}, 7, v{eA}",
                       f"s_lshl_b32 s{sT0}, s{sW}, 11", f"s_add_u32 s{sT0}, s{sT0}, {YB}", f"v_add_u32 v{eA}, s{sT0}, v{eA}", f"v_xor_b32 v237, 16, v{eA}")
                FQ.add(f"v_xor_b32 v252, s{sW}, v{eC}", "v_lshlrev_b32 v252, 4, v252", f"v_lshl_add_u32 v252, v{eC}, 10, v252", f"v_lshl_add_u32 v252, v{eR}, 1, v252",
                       f"v_add_u32 v252, {YB}, v252", "v_xor_b32 v253, 64, v252")
                for e in range(16): FQ.add(f"v_mov_b32 v{112+e}, 0")
            if m == 84:
                FQ.flush(A); MV.flush(A); A.wait(lgkm=emv); A("s_barrier")
                pw = pwrite(0); FQ.add(Skip(2))
                for it in pw: FQ.add(it, Skip(1))
                V.flush(A)
                ywr = [Ins(f"ds_write_b128 v{eA}, {v(eY,4)}"), Ins(f"ds_write_b128 v237, {v(eY+4,4)} offset:1024")]
                FQ.add(*self.tag_check(yl, [f"v{eY}", f"v{eY+4}"], 238)); FQ.add(*ywr); FQ.add(Skip(2), Wait(lgkm=pw + ywr), "s_barrier")
                FQ.add(*pread(0, pr))
                for e in range(8): FQ.add(f"ds_read_u16_d16_hi v{112+e}, v252 offset:{e*128}")
                for e in range(8): FQ.add(f"ds_read_u16_d16_hi v{120+e}, v253 offset:{e*128}")
                for e in range(16): FQ.add(f"v_mul_f32 v{eP+e}, v{eP+e}, v{112+e}")
                finish(FQ, 0, pr, False)
            t_ = (HA if g == 0 else HB)[s][sg * 2 + tg]
            while not issued(t_[1]): assert vtake()
            acc = v(fACC(tg, dh), 16)
            if g == 1 and m < 84: assert not any(it in MV.q for it in emv[8 * s: 8 * s + 8])
            A(f"{MF32} {acc}, {a_(aWD(s, sg, dh), 4)}, {t_[0]}, {'0' if m < 4 else acc}")
            bud = o.bud
            if m & 1: bud -= vtake()
            else: bud = MV.take(A, 8) - 8 + bud
            FQ.take(A, bud)
        self.stamp(A, "f2end")
        pw = Fill(); pw.add(*pwrite(1))
        FQ.take(A, 40)
        while pw.q: pw.take(A, 4); FQ.take(A, 24)
        A.wait(alllgkm=True); A("s_barrier")
        for it in pread(1, pr + 32): A.add(it)
        FQ.flush(A)
        finish(A, 1, pr + 32, True)
        self.stamp(A, "end")
        if o.ts:
            A("v_writelane_b32 v0, s3, 0")
            A(f"v_lshlrev_b32 v2, 2, {L}"); A(f"s_lshl2_add_u32 s{sT0}, s2, s{sW}"); A(f"s_lshl_b32 s{sT0}, s{sT0}, 8"); A(f"s_add_u32 s{sT0}, s{sT0}, {WS_TS}")
            A(f"buffer_store_dword v0, v2, {srd(rWS)}, s{sT0} offen")
        A("s_endpgm")
        return A

    def helper(self):
        o = self.opt
        A = Asm(); L = f"v{vL}"
        A.raw("L_helper:")
        A("s_waitcnt lgkmcnt(0)")
        rK, rV, rSH = 32, 36, 40
        sHW = 60
        hn = [1]
        def hst(name):
            if not o.hts: return
            hn[0] += 1; A(f"{o.clk} s[64:65]"); A("s_waitcnt lgkmcnt(0)"); A(f"s_mov_b32 s{66+hn[0]}, s64")
        hst("karg")
        self.mksrd(A, rK, sK, S * D * 2); self.mksrd(A, rV, sV, S * D * 2); self.mksrd(A, rSH, sSH, D * 8)
        self.mksrd(A, rWS, sWS, WS_SIZE); self.mksrd(A, rDBG, sDBG, 256)
        A(f"s_sub_u32 s{sHW}, s2, 224")
        A(f"s_or_b32 s{sT0}, s{sHW}, s{sW}"); A(f"s_cmp_eq_u32 s{sT0}, 0"); A(f"s_cselect_b32 s{sT3}, 0, {BIG}"); A(f"s_add_u32 s{sT0}, s{sT3}, {WS_FL}")
        A(f"v_lshl_add_u32 v2, {L}, 4, s{sT0}")
        for e in range(4): A(f"v_mov_b32 v{4+e}, 0")
        clr = [A(f"buffer_store_dwordx4 v[4:7], v2, {srd(rWS)}, 0 offen offset:{m*1024} sc1") for m in range(4)]
        A(f"s_lshl_b32 s{sT0}, s{sHW}, 6"); A(f"s_lshl_b32 s{sT1}, s{sW}, 4"); A(f"s_add_u32 s{sT0}, s{sT0}, s{sT1}"); A(f"s_mul_i32 s{sT0}, s{sT0}, 896")
        A(f"v_lshl_add_u32 v8, {L}, 4, s{sT0}")
        for g in range(1, 4): A(f"v_add_u32 v{8+g}, {g*3584}, v8")
        for r in range(3): A(f"v_subrev_u32 v{12+r}, {(3-r)*896}, v8")
        SHR, KR, VR, WW, KW, VT, AC = 16, 32, 108, 172, 204, 236, 240
        A(f"v_lshlrev_b32 v15, 4, v0"); A(f"s_lshl_b32 s{sT0}, s{sW}, 10"); A(f"s_add_u32 m0, s{sT0}, 65536")
        shd = A(f"buffer_load_dwordx4 v15, {srd(rSH)}, 0 offen lds")
        LQ = []
        for r in range(3): LQ.append(f"buffer_load_dwordx4 {v(KR+4*r,4)}, v{12+r}, {srd(rK)}, 0 offen")
        for t in range(16):
            LQ.append(f"buffer_load_dwordx4 {v(KR+4*(t+3),4)}, v{8+(t>>2)}, {srd(rK)}, 0 offen offset:{(t&3)*896}")
            LQ.append(f"buffer_load_dwordx4 {v(VR+4*t,4)}, v{8+(t>>2)}, {srd(rV)}, 0 offen offset:{(t&3)*896}")
        for _ in range(o.hpre): A(LQ.pop(0))
        A(f"v_lshlrev_b32 v15, 6, {L}"); A("v_add_u32 v15, 65536, v15")
        A.wait(vm=[shd]); A("s_barrier")
        for m in range(4): A(f"ds_read_b128 {v(SHR+4*m,4)}, v15 offset:{16*m}")
        hst("issued")
        A(f"v_mov_b32 v2, {BIG}"); A(f"v_writelane_b32 v2, s{sT3}, 0"); A("v_mov_b32 v7, 2")
        A.wait(vm=clr); A(f"buffer_store_dword v7, v2, {srd(rDBG)}, 0 offen sc1")
        A("s_mov_b32 s61, 0xffff0000")
        A(f"s_sub_u32 s{sT0}, 3, s{sW}"); A(f"s_lshl_b32 s{sT0}, s{sT0}, 1"); A(f"v_and_b32 v4, 7, {L}"); A(f"v_xor_b32 v5, s{sT0}, v4")
        A("v_lshlrev_b32 v5, 4, v5"); A(f"v_lshl_add_u32 v5, {L}, 10, v5"); A("v_xor_b32 v6, 16, v5")
        for d in range(8):
            for pr_ in range(2):
                src = SHR + 2 * d + pr_
                A(f"v_lshlrev_b32 v{WW+8*(2*pr_)+d}, 16, v{src}"); A(f"v_and_b32 v{WW+8*(2*pr_+1)+d}, s61, v{src}")
        def unpk(r):
            for e in range(4):
                A(f"v_lshlrev_b32 v{KW+8*(r&3)+2*e}, 16, v{KR+4*r+e}"); A(f"v_and_b32 v{KW+8*(r&3)+2*e+1}, s61, v{KR+4*r+e}")
        for r in range(3): unpk(r)
        hst("first")
        O = SHR
        for t in range(16):
            unpk(t + 3)
            if LQ: A(LQ.pop(0))
            ac = AC + 8 * (t & 1)
            for i in range(4):
                for e in range(4):
                    kw = v(KW + 8 * ((t + 3 - i) & 3) + 2 * e, 2); ww = v(WW + 8 * i + 2 * e, 2)
                    if i == 0: A(f"v_pk_mul_f32 {v(ac+2*e,2)}, {kw}, {ww}")
                    else: A(f"v_pk_fma_f32 {v(ac+2*e,2)}, {kw}, {ww}, {v(ac+2*e,2)}")
            if LQ: A(LQ.pop(0))
            for e in range(4):
                vt = VT + 2 * (e & 1)
                A(f"v_lshlrev_b32 v{vt}, 16, v{VR+4*t+e}"); A(f"v_and_b32 v{vt+1}, s61, v{VR+4*t+e}")
                A(f"v_pk_mul_f32 {v(ac+2*e,2)}, {v(ac+2*e,2)}, {v(vt,2)}")
            if t & 1:
                dw = 3 - ((t & 7) >> 1)
                for d in range(8): A(f"v_cvt_pk_bf16_f32 v{O+4*d+dw}, v{AC+8+d}, v{AC+d}")
            if (t & 7) == 7:
                for d in range(8): A(f"ds_write_b128 v{6 if t < 8 else 5}, {v(O+4*d,4)} offset:{d*128}")
        hst("computed")
        A(f"v_lshrrev_b32 v10, 3, {L}"); A("v_lshlrev_b32 v11, 12, v10"); A("v_lshl_add_u32 v11, v4, 4, v11")
        A(f"s_mul_i32 s{sT0}, s{sW}, 14")
        A(f"s_lshl_b32 s{sT1}, s{sHW}, 7"); A(f"s_sub_u32 s{sT1}, {WS_KVR+3968}, s{sT1}"); A(f"s_lshl_b32 s{sT2}, s{sT0}, 15"); A(f"s_add_u32 s{sT1}, s{sT1}, s{sT2}")
        A(f"s_lshl_b32 s{sT2}, s{sT0}, 10"); A(f"v_lshl_add_u32 v10, v10, 7, s{sT2}")
        A.wait(alllgkm=True); A("s_barrier")
        for m in range(14):
            A(f"s_add_u32 s{sT2}, s{sT0}, {m}"); A(f"s_and_b32 s{sT2}, s{sT2}, 7"); A(f"v_xor_b32 v12, s{sT2}, v4"); A("v_lshl_add_u32 v12, v12, 4, v10")
            A(f"ds_read_b128 {v(32+4*m,4)}, v12 offset:{m*1024}")
        hst("ldsrd")
        sts = []
        for m in range(14):
            sts.append(A(f"buffer_store_dwordx4 {v(32+4*m,4)}, v11, {srd(rWS)}, s{sT1} offen sc1"))
            A(f"s_add_u32 s{sT1}, s{sT1}, 32768")
        A(f"s_lshl2_add_u32 s{sT0}, s{sHW}, 128"); A(f"s_cmp_eq_u32 s{sW}, 0"); A(f"s_cselect_b32 s{sT0}, s{sT0}, {BIG}")
        A(f"v_mov_b32 v2, {BIG}"); A(f"v_writelane_b32 v2, s{sT0}, 0")
        hst("stissued")
        A(f"s_lshl2_add_u32 s{sT0}, s{sHW}, s{sW}"); A(f"s_mul_i32 s{sT0}, s{sT0}, 14336"); A(f"s_add_u32 s{sT0}, s{sT0}, {WS_YT}"); A(f"v_lshlrev_b32 v3, 4, {L}")
        for e in range(4): A(f"v_mov_b32 v{AC+e}, -1")
        A("v_mov_b32 v8, 1")
        A.wait(allvm=True); A("s_barrier"); A(f"buffer_store_dword v8, v2, {srd(rDBG)}, 0 offen sc1")
        if o.ts: A(f"{o.clk} s[62:63]")
        for m in range(14):
            A(f"buffer_store_dwordx4 {v(AC,4)}, v3, {srd(rWS)}, s{sT0} offen offset:{(m&1)*1024} sc1")
            if m & 1: A(f"s_add_u32 s{sT0}, s{sT0}, 2048")
        A.wait(allvm=True); A("s_barrier"); A(f"buffer_store_dword v7, v2, {srd(rDBG)}, 0 offen sc1")
        if o.ts:
            A("s_waitcnt lgkmcnt(0)"); A("v_mov_b32 v4, s62"); A("v_writelane_b32 v4, s30, 0")
            for k in range(2, hn[0] + 1): A(f"v_writelane_b32 v4, s{66+k}, {k}")
            if True: A(f"v_lshlrev_b32 v2, 2, v0"); A(f"s_lshl_b32 s{sT0}, s2, 10"); A(f"s_add_u32 s{sT0}, s{sT0}, {WS_TS}")
            A(f"buffer_store_dword v4, v2, {srd(rWS)}, s{sT0} offen")
        A("s_endpgm")
        return A

    def build(self):
        A = self.entry()
        self.main(A)
        t_main = A.finalize(); H = self.helper(); t_help = H.finalize()
        sys.stderr.write(f"main: {A.stats}  helper: {H.stats}\n")
        head = open(self.opt.ref).read().split("; Override launch")[0]
        txt = head + f"; @launch grid=(256,1,1) block=(256,1,1) lds={LDS_BYTES}\n"
        txt += f'.amdgcn_target "amdgcn-amd-amdhsa--gfx950"\n.text\n.globl {NAME}_kernel\n.p2align 8\n.type {NAME}_kernel,@function\n{NAME}_kernel:\n'
        txt += t_main + "\n" + t_help + "\n" + "\n".join(self.slow) + "\nL_exit:\n    s_endpgm\n"
        txt += f""".section .rodata,"a"
.p2align 6
.amdhsa_kernel {NAME}_kernel
  .amdhsa_next_free_vgpr 512
  .amdhsa_next_free_sgpr 102
  .amdhsa_accum_offset 256
  .amdhsa_group_segment_fixed_size 0
  .amdhsa_kernarg_size 104
  .amdhsa_user_sgpr_count 2
  .amdhsa_user_sgpr_kernarg_segment_ptr 1
  .amdhsa_system_sgpr_workgroup_id_x 1
  .amdhsa_float_denorm_mode_32 3
.end_amdhsa_kernel
"""
        if self.opt.ts: txt = txt.replace("; @launch", "; stamps: " + ",".join(self.tsnames) + ("\n; clk=cycles" if self.opt.clk == "s_memtime" else "") + "\n; @launch", 1)
        return txt

if __name__ == "__main__":
    p = argparse.ArgumentParser()
    p.add_argument("-o", default=f"cdna_kernels/{NAME}.s")
    p.add_argument("--ref", default=f"cdna_kernels/{NAME}.s.ref")
    p.add_argument("--ts", default="")
    p.add_argument("--clk", default="s_memrealtime")
    p.add_argument("--pre_gap", type=int, default=14)
    p.add_argument("--pre2", type=int, default=0)
    p.add_argument("--v3", type=int, default=4)
    p.add_argument("--cgap", type=int, default=4)
    p.add_argument("--pk", type=int, default=1)
    p.add_argument("--nopoll", action="store_true")
    p.add_argument("--yld", type=int, default=17)
    p.add_argument("--xpre", type=int, default=12)
    p.add_argument("--probe0", type=int, default=0)
    p.add_argument("--pollb1", type=int, default=20)
    p.add_argument("--chkb1", type=int, default=70)
    p.add_argument("--sig2", type=int, default=95)
    p.add_argument("--pollb2", type=int, default=144)
    p.add_argument("--chkb2", type=int, default=8)
    p.add_argument("--pollarr", type=int, default=24)
    p.add_argument("--arrchk", type=int, default=1)
    p.add_argument("--bud", type=int, default=24)
    p.add_argument("--hts", type=int, default=0)
    p.add_argument("--hpre", type=int, default=17)
    p.add_argument("--slp", type=int, default=4)
    p.add_argument("--rot", type=int, default=6)
    p.add_argument("--nopf", action="store_true")
    o = p.parse_args()
    open(o.o, "w").write(Gen(o).build())
```

```python
import sys, argparse
from asmfw import Asm, Ins, Wait, Raw

NAME = "recurrent_scan__ssm_conv_h3__glu_gated_geglu__prompt"
S, D, F = 2048, 448, 1792
WS_H, WS_KVR, WS_YT, WS_ST, WS_FL, WS_TS = 0, 8 << 20, 10 << 20, 12 << 20, 13 << 20, 14 << 20
WS_SIZE = 15 << 20
FL_B, FL_C, FL_A = 0, 4096, 4096 + 7 * 512
BIG = 0x7f000000
SLOT = 16384
CB = 5 * SLOT
KCH, KCP = 16640, 4160
RB, RCH = CB + 33280, 4608
XS1 = 4 * SLOT
XS2 = CB + 43008
BSLOT = [6, 7, 0, 1, 2, 3, 4]
DSA = [8, 9, 5, 6, 7, 0, 1]
DSB = [8, 9, 2, 3, 4, 0, 1]
LDS_BYTES = 163840
sX, sK, sV, sSH, sKF, sD, sWG, sWU, sWD, sOUT, sDBG, sWS = 4, 6, 8, 10, 12, 14, 18, 20, 22, 24, 26, 28
rX, rW, rWD, rWS, rKF, rOUT, rDBG = 32, 36, 40, 44, 48, 52, 56
sXO, sWO, sDO, sHO = 60, 67, 74, 81
sW, sLW, sRT, sFT, sRHO, sI, sJ, sT0, sT1, sT2, sT3 = 88, 89, 90, 91, 92, 93, 94, 95, 96, 97, 98
sM1, sM2, sMH = 16, 30, 0
sDV, sCNT = 99, 100
sHS = [6, 7, 8, 9]
sR64, sDT, sYO = 10, 11, 101
def srd(r): return f"s[{r}:{r+3}]"
def v(a, n=1): return f"v{a}" if n == 1 else f"v[{a}:{a+n-1}]"
def a_(a, n=1): return f"a{a}" if n == 1 else f"a[{a}:{a+n-1}]"
def sp(a): return f"s[{a}:{a+1}]"
vL = 1
vXD, vWD_, vDD = 2, 6, 10
def vXR(st, b, s): return 68 + st * 8 + b * 4 + s
def vWR(st, al): return 30 + st * 2 + al
def vDR(st, dh): return 34 + st * 2 + dh
vH = [40, 41, 42, 43]
vA0, vA1, vIR = 44, 46, 48
vFLG = 50
vTMP = 51
vAC = [52, 56]; vBC = [60, 64]
vT, vN = 68, 72
vO = [76, 80]
vSEL = 92; vSUM, vSQ, vSA, vSB0, vSQ2 = 96, 100, 104, 108, 88
def vWF(buf, al): return 112 + buf * 8 + al * 4
def vACC(g, al, be): return 128 + g * 64 + (2 * al + be) * 16
def aXF(s, st, be): return s * 32 + (st * 2 + be) * 4
def aWD(s, sg, dh): return s * 32 + (sg * 2 + dh) * 4
def aHA(s, sg, tg): return s * 32 + 16 + (sg * 2 + tg) * 4
HB_REGS = [v(44 + 4 * i, 4) for i in range(17)] + [a_(224 + 4 * i, 4) for i in range(8)] + [v(240 + 4 * i, 4) for i in range(3)]
def rHB(s, sg, tg): return HB_REGS[tg * 14 + s * 2 + sg]

C0 = -2.0 * 0.7978845608028654 * 1.4426950408889634
C1 = C0 * 0.044715
import struct
def fl(x): return "0x%08x" % struct.unpack("<I", struct.pack("<f", x))[0]

MF32 = "v_mfma_f32_32x32x16_bf16"
MF16 = "v_mfma_f32_16x16x32_bf16"
MF4 = "v_mfma_f32_4x4x4_16b_bf16"

def cost(it):
    if isinstance(it, str): it = Ins(it)
    if not isinstance(it, Ins): return 0
    return 8 if it.kind == 'trans' else 4

class Call:
    def __init__(self, fn): self.fn = fn

class Skip:
    def __init__(self, n): self.n = n

class Fill:
    def __init__(self): self.q = []
    def add(self, *its):
        r = None
        for it in its:
            if isinstance(it, str): it = Ins(it)
            self.q.append(it); r = it
        return r
    def take(self, A, budget):
        while self.q:
            if isinstance(self.q[0], Skip):
                if budget < (1 << 20) and self.q[0].n > 0: self.q[0].n -= 1; break
                self.q.pop(0); continue
            c = cost(self.q[0])
            if c > budget and c > 0: break
            it = self.q.pop(0); budget -= c
            if isinstance(it, Call): it.fn()
            else: A.add(it)
            if isinstance(it, Ins) and it.op.startswith(('s_cmp', 's_bitcmp')):
                assert self.q[0].op.startswith('s_cselect')
                while self.q and isinstance(self.q[0], Ins) and self.q[0].op.startswith('s_cselect'):
                    A.add(self.q.pop(0)); budget -= 4
            if isinstance(it, Ins) and it.op.startswith('v_cmp') and self.q and isinstance(self.q[0], Ins) and self.q[0].op.startswith(('s_cbranch', 's_nop')):
                A.add(self.q.pop(0)); budget -= 4
        return budget
    def flush(self, A):
        while self.q: self.take(A, 1 << 20)

class VQ:
    def __init__(self): self.q = []
    def add(self, its):
        its = [Ins(i) if isinstance(i, str) else i for i in its]
        g = []
        for it in its:
            g.append(it)
            if isinstance(it, Ins) and it.kind == 'vmem': self.q.append(g); g = []
        if g: self.q.append(g)
        return its[-1]
    def take(self, A):
        if not self.q: return 0
        g = self.q.pop(0)
        for it in g: A.add(it)
        return sum(cost(i) for i in g)
    def flush(self, A):
        while self.q: self.take(A)

class Gen:
    def __init__(self, opt):
        self.opt = opt; self.slow = []; self.nslow = 0; self.nts = 0
    def mksrd(self, A, r, p, size):
        A(f"s_mov_b32 s{r}, s{p}"); A(f"s_mov_b32 s{r+1}, s{p+1}"); A(f"s_mov_b32 s{r+2}, {size}"); A(f"s_mov_b32 s{r+3}, 0x20000")
    def stamp(self, A, name):
        if not self.opt.ts: return
        sel = self.opt.ts.split(',')
        if not (name in sel or ('all' in sel and '.' not in name) or name.split('.')[0] + '.*' in sel): return
        k = self.nts; self.nts += 1
        self.tsnames.append(name)
        A(f"{self.opt.clk} s[18:19]"); A("s_waitcnt lgkmcnt(0)")
        A(f"v_writelane_b32 v0, s18, {k+1}")
    def poll_items(self, load_text, dst, n, level, alt_reg=None):
        k = self.nslow; self.nslow += 1
        ld = Ins(load_text)
        chk = []; assert n == 1
        chk += [Ins(f"v_cmp_gt_u32 vcc, {level}, v{dst}"), Ins(f"s_cbranch_vccnz L_slow{k}") if not self.opt.nopoll else Ins("s_nop 0"), Raw(f"L_back{k}:")]
        sl = [f"L_slow{k}:", f"    s_mov_b32 s{sCNT}, 0x20000", f"L_slowl{k}:", "    " + load_text, "    s_waitcnt vmcnt(0)",
              f"    v_cmp_gt_u32 vcc, {level}, v{dst}", "    s_nop 4", f"    s_cbranch_vccz L_back{k}", f"    s_sleep {self.opt.slp}",
              f"    s_sub_u32 s{sCNT}, s{sCNT}, 1", f"    s_cmp_lg_u32 s{sCNT}, 0", f"    s_cbranch_scc1 L_slowl{k}", f"    s_branch L_back{k}"]
        self.slow += sl
        return ld, chk

    def tag_check(self, loads, regs, tmp):
        k = self.nslow; self.nslow += 1
        body = []; src = []
        for i, r in enumerate(regs):
            if r[0] == 'a': body.append(f"v_accvgpr_read_b32 v{tmp+i}, {r}"); src.append(f"v{tmp+i}")
            else: src.append(r)
        if len(src) == 4: body += [f"v_max3_u32 v{tmp}, {src[0]}, {src[1]}, {src[2]}", f"v_max_u32 v{tmp}, v{tmp}, {src[3]}"]
        else: body += [f"v_max_u32 v{tmp}, {src[0]}, {src[1]}"]
        body.append(f"v_cmp_eq_u32 vcc, -1, v{tmp}")
        def issued(): assert all(any(isinstance(x, Ins) and x.text == t for x in self.A.items) for t in loads), "check before its loads"
        chk = [Call(issued)] + [Ins(t) for t in body] + [Ins(f"s_cbranch_vccnz L_slow{k}") if not self.opt.nopoll else Ins("s_nop 0"), Raw(f"L_back{k}:")]
        self.slow += [f"L_slow{k}:", f"    s_mov_b32 s{sCNT}, 0x20000", f"L_slowl{k}:"] + ["    " + t for t in loads] + ["    s_waitcnt vmcnt(0)"] + ["    " + t for t in body]
        self.slow += ["    s_nop 4", f"    s_cbranch_vccz L_back{k}", f"    s_sleep {self.opt.slp}", f"    s_sub_u32 s{sCNT}, s{sCNT}, 1", f"    s_cmp_lg_u32 s{sCNT}, 0", f"    s_cbranch_scc1 L_slowl{k}", f"    s_branch L_back{k}"]
        return chk

    def entry(self):
        A = Asm()
        if self.opt.ts: A(f"{self.opt.clk} s[30:31]")
        A("s_cmp_ge_u32 s2, 256"); A("s_cbranch_scc1 L_exit")
        A("s_load_dwordx16 s[4:19], s[0:1], 0"); A("s_load_dwordx8 s[20:27], s[0:1], 64"); A("s_load_dwordx2 s[28:29], s[0:1], 96")
        A(f"v_and_b32 v{vL}, 63, v0"); A("v_lshrrev_b32 v2, 6, v0"); A(f"v_readfirstlane_b32 s{sW}, v2")
        A("s_cmp_ge_u32 s2, 224"); A("s_cbranch_scc1 L_helper")
        return A

    def main(self, A):
        o = self.opt
        L = f"v{vL}"
        self.tsnames = []; self.A = A
        sTH, sFH = sT2, sT3
        A(f"s_and_b32 s{sT0}, s2, 7"); A(f"s_lshr_b32 s{sT1}, s2, 3")
        A(f"s_and_b32 s{sI}, s{sT1}, 3"); A(f"s_lshr_b32 s{sJ}, s{sT1}, 2")
        A(f"s_lshr_b32 s{sRT}, s{sT0}, 1"); A(f"s_lshl2_add_u32 s{sRT}, s{sRT}, s{sI}")
        A(f"s_and_b32 s{sFT}, s{sT0}, 1"); A(f"s_mul_i32 s{sFT}, s{sFT}, 7"); A(f"s_add_u32 s{sFT}, s{sFT}, s{sJ}")
        def kappa(s):
            if o.rot == 7:
                if s == 0: r = [f"s_lshl1_add_u32 s{sRHO}, s{sI}, s{sJ}", f"s_sub_u32 s{sT1}, s{sRHO}, 7", f"s_cselect_b32 s{sRHO}, s{sRHO}, s{sT1}"]
                else: r = [f"s_add_u32 s{sRHO}, s{sRHO}, 1", f"s_cmp_eq_u32 s{sRHO}, 7", f"s_cselect_b32 s{sRHO}, 0, s{sRHO}"]
            elif s == 0: return [f"s_mov_b32 s{sXO}, 0", f"s_mov_b32 s{sWO}, 0"]
            elif s == 1:
                if o.rot == 0: r = [f"s_mov_b32 s{sRHO}, 1"]
                else: r = [f"s_mul_i32 s{sRHO}, s{sI}, 3", f"s_add_u32 s{sRHO}, s{sRHO}, 1", f"s_lshr_b32 s{sRHO}, s{sRHO}, 1", f"s_add_u32 s{sRHO}, s{sRHO}, s{sJ}",
                           f"s_add_u32 s{sRHO}, s{sRHO}, 1", f"s_sub_u32 s{sT1}, s{sRHO}, 6", f"s_cmp_gt_u32 s{sRHO}, 6", f"s_cselect_b32 s{sRHO}, s{sT1}, s{sRHO}"]
            else: r = [f"s_add_u32 s{sRHO}, s{sRHO}, 1", f"s_cmp_eq_u32 s{sRHO}, 7", f"s_cselect_b32 s{sRHO}, 1, s{sRHO}"]
            return r + [f"s_lshl_b32 s{sXO+s}, s{sRHO}, 7", f"s_mul_i32 s{sWO+s}, s{sRHO}, {64*3584}"]
        for t in kappa(0): A(t)
        A(f"s_lshl_b32 s{sLW}, s{sW}, 12")
        A(f"v_lshrrev_b32 v44, 3, {L}"); A(f"v_and_b32 v45, 7, {L}"); A(f"v_lshrrev_b32 v46, 4, {L}")
        A(f"s_lshl2_add_u32 s{sT1}, s{sRT}, s{sW}"); A(f"s_mul_i32 s{sT1}, s{sT1}, {32*896}")
        A("v_mul_u32_u24 v47, 896, v44"); A(f"v_add_u32 v47, s{sT1}, v47")
        A("v_xor_b32 v48, v45, v46"); A(f"v_lshl_add_u32 v{vXD}, v48, 4, v47")
        A(f"v_add_u32 v{vXD+1}, 6144, v{vXD}"); A(f"v_xor_b32 v{vXD+1}, 64, v{vXD+1}")
        A(f"v_add_u32 v{vXD+2}, {2*6144}, v{vXD}"); A(f"v_add_u32 v{vXD+3}, {2*6144}, v{vXD+1}")
        A(f"s_and_b32 s{sTH}, s{sW}, 1"); A(f"s_mul_i32 s{sT1}, s{sTH}, {32*3584}"); A(f"s_lshl_b32 s{sT0}, s{sFT}, 8"); A(f"s_add_u32 s{sT1}, s{sT1}, s{sT0}")
        A("v_mul_u32_u24 v47, 3584, v44"); A(f"v_add_u32 v47, s{sT1}, v47")
        A(f"s_and_b32 s{sT0}, s{sW}, 2")
        A("v_and_b32 v48, 1, v46"); A(f"v_or_b32 v48, s{sT0}, v48"); A("v_lshlrev_b32 v48, 1, v48"); A("v_xor_b32 v48, v45, v48")
        A(f"v_lshl_add_u32 v{vWD_}, v48, 4, v47")
        for m in range(1, 4): A(f"v_add_u32 v{vWD_+m}, {m*27648}, v{vWD_}")
        A(f"s_mov_b32 s{rX+2}, {S*D*2}"); A(f"s_mov_b32 s{rX+3}, 0x20000"); A(f"s_mov_b32 s{rW+2}, {D*F*2}"); A(f"s_mov_b32 s{rW+3}, 0x20000")
        A(f"s_mov_b32 m0, s{sLW}"); A(f"s_cmp_ge_u32 s{sW}, 2")
        A(f"s_mov_b32 s{rX}, s{sX}"); A(f"s_mov_b32 s{rX+1}, s{sX+1}")
        A(f"s_cselect_b32 s{rW}, s{sWU}, s{sWG}"); A(f"s_cselect_b32 s{rW+1}, s{sWU+1}, s{sWG+1}")
        if o.ts: A("s_mov_b32 s3, s30")
        def m0set(base): return Ins(f"s_add_u32 m0, s{sLW}, {base}") if base else Ins(f"s_mov_b32 m0, s{sLW}")
        def dma_x(s): return [m0set(2 * (s & 3) * SLOT)] + [Ins(f"buffer_load_dwordx4 v{vXD+m}, {srd(rX)}, s{sXO+s} offen offset:{m*1024} lds") for m in range(4)]
        def dma_w(slot, s): return [m0set(slot * SLOT)] + [Ins(f"buffer_load_dwordx4 v{vWD_+m}, {srd(rW)}, s{sWO+s} offen offset:{m*1024} lds") for m in range(4)]
        def dma_d(slot, s): return [m0set(slot * SLOT)] + [Ins(f"buffer_load_dwordx4 v{vDD+m}, {srd(rWD)}, s{sDO+s} offen offset:{m*1024} lds") for m in range(4)]
        stA = {}
        self.stamp(A, "S.karg")
        for it in dma_x(0)[1:] + dma_w(1, 0): A.add(it)
        stA[0] = A.items[-1]
        self.stamp(A, "S.iss0")
        if o.probe0: A.wait(vm=[stA[0]]); self.stamp(A, "S.land0")
        Q = Fill()
        if o.pf:
            A(f"s_getpc_b64 {sp(sM1)}"); A.raw("L_pc:")
            A(f"v_lshlrev_b32 v47, 7, {L}"); A(f"s_lshl_b32 s{sT0}, s{sW}, 13"); A(f"v_add_u32 v47, s{sT0}, v47"); A("v_min_u32 v47, L_exit-L_pc, v47"); A(f"global_load_dword v255, v47, {sp(sM1)}")
        for t in kappa(1): A(t)
        for s in range(2, 7): Q.add(*kappa(s))
        Q.add(f"s_lshr_b32 s{sFH}, s{sW}, 1")
        Q.add(f"v_and_b32 v47, 31, {L}", f"v_lshrrev_b32 v48, 5, {L}", f"v_bfe_u32 v49, {L}, 1, 3", "v_xor_b32 v49, v49, v48", "v_lshlrev_b32 v49, 4, v49", "v_lshl_add_u32 v49, v47, 7, v49")
        Q.add(f"s_lshl1_add_u32 s{sT0}, s{sTH}, s{sFH}", f"s_lshl_b32 s{sT0}, s{sT0}, 12", f"v_add_u32 v{vXR(0,0,0)}, s{sT0}, v49")
        for s in range(1, 4): Q.add(f"v_xor_b32 v{vXR(0,0,s)}, {32*s}, v{vXR(0,0,0)}")
        for s in range(4): Q.add(f"v_xor_b32 v{vXR(0,1,s)}, 4096, v{vXR(0,0,s)}")
        for b in range(2):
            for s in range(4): Q.add(f"v_or_b32 v{vXR(1,b,s)}, 0x10000, v{vXR(0,b,s)}")
        Q.add(f"v_bfe_u32 v50, {L}, 2, 2", "v_lshl_add_u32 v51, v48, 3, v50", "v_lshlrev_b32 v51, 7, v51", f"v_bfe_u32 v52, {L}, 4, 1", f"v_and_b32 v53, 1, {L}",
              f"v_bfe_u32 v54, {L}, 1, 1", f"v_bfe_u32 v55, {L}, 3, 1")
        Q.add("v_lshl_add_u32 v56, v54, 13, v51", "v_lshl_add_u32 v56, v53, 4, v56", "v_lshl_add_u32 v56, v52, 3, v56", "v_lshl_add_u32 v57, v54, 1, v55",
              f"v_xor_b32 v57, s{sW}, v57", f"v_lshl_add_u32 v{vWR(0,0)}, v57, 5, v56", f"v_xor_b32 v{vWR(0,1)}, 32, v{vWR(0,0)}",
              f"v_or_b32 v{vWR(1,0)}, 0x10000, v{vWR(0,0)}", f"v_or_b32 v{vWR(1,1)}, 0x10000, v{vWR(0,1)}")
        Q.add(f"v_and_b32 v57, 7, {L}", "v_lshlrev_b32 v58, 2, v52", "v_cmp_eq_u32 vcc, v57, v58", "v_mov_b32 v57, 0x3f803f80")
        for e in range(4): Q.add(f"v_cndmask_b32 v{vSEL+e}, 0, v57, vcc")
        Q.add(f"s_lshl_b32 s{sT0}, s2, 2", f"s_load_dword s{sDV}, {sp(sD)}, s{sT0}")
        V = VQ()
        stA[1] = V.add(dma_x(1) + dma_w(3, 1))
        while V.q: V.take(A); Q.take(A, 4 * o.pre_gap)
        Q.flush(A)
        self.stamp(A, "S.q")
        stA[2] = V.add(dma_x(2) + dma_w(5, 2))
        for _ in range(o.pre2): V.take(A)
        stA[3] = V.add(dma_x(3) + dma_w(7, 3))
        A.wait(alllgkm=True)
        self.stamp(A, "setup")

        FQ = Fill(); VL = VQ()
        cvA, cvB, cD, vRW, vRZ, vFX, vFD, vKW, vX2, vX1o, vX1p, vST, vPD, vPB = 14, 15, 16, 20, 21, 22, 23, 24, 25, 26, 27, 28, 29, 5
        q = FQ
        q.add(f"s_and_b32 s{sT0}, s2, 7", f"s_lshl2_add_u32 s{sR64}, s{sT0}, s{sI}", f"s_mov_b32 s{sDT}, s{sJ}")
        for r, p_, sz in ((rWD, sWD, D * F * 2), (rWS, sWS, WS_SIZE), (rKF, sKF, D * S * 2), (rOUT, sOUT, S * D * 2), (rDBG, sDBG, 256)):
            q.add(f"s_mov_b32 s{r}, s{p_}", f"s_mov_b32 s{r+1}, s{p_+1}", f"s_mov_b32 s{r+2}, {sz}", f"s_mov_b32 s{r+3}, 0x20000")
        srd_done = q.add("s_nop 0")
        q.add("v_lshl_add_u32 v56, v53, 5, v51", "v_lshl_add_u32 v56, v52, 4, v56", "v_lshl_add_u32 v56, v54, 3, v56", f"v_add_u32 v56, s{sLW}, v56",
              f"v_lshl_add_u32 v{vDR(0,0)}, v55, 6, v56", f"v_xor_b32 v{vDR(0,1)}, 64, v{vDR(0,0)}")
        for dh in range(2): q.add(f"v_or_b32 v{vDR(1,dh)}, 0x10000, v{vDR(0,dh)}", f"v_or_b32 v{vDR(2,dh)}, 0x20000, v{vDR(0,dh)}")
        q.add("v_mul_u32_u24 v47, 896, v44", f"s_lshl_b32 s{sT0}, s{sDT}, 7", f"v_add_u32 v47, s{sT0}, v47", "v_xor_b32 v58, v45, v58", f"v_lshl_add_u32 v{vDD}, v58, 4, v47")
        for m in range(1, 4): q.add(f"v_add_u32 v{vDD+m}, {m*6144}, v{vDD}")
        q.add(f"s_mul_i32 s{sCNT}, s{sR64}, {2*112}", f"s_mul_i32 s{sRHO}, s{sW}, 14")
        for s in range(7):
            q.add(f"s_lshr_b32 s{sT0}, s{sXO+s}, 6", f"s_add_u32 s{sT0}, s{sT0}, s{sRHO}", f"s_add_u32 s{sHO+s}, s{sT0}, s{sCNT}", f"s_lshl_b32 s{sHO+s}, s{sHO+s}, 10",
                  f"s_and_b32 s{sT1}, s{sT0}, 0xfc", f"s_add_u32 s{sT0}, s{sT0}, s{sT1}", f"s_mul_i32 s{sDO+s}, s{sT0}, {16*896}")
        q.add(f"v_lshlrev_b32 v{vH[0]}, 4, {L}", f"v_add_u32 v{vH[1]}, {112*1024}, v{vH[0]}", f"v_add_u32 v{vH[2]}, {56*1024}, v{vH[0]}", f"v_add_u32 v{vH[3]}, {168*1024}, v{vH[0]}")
        q.add(f"s_lshl1_add_u32 s{sT0}, s{sTH}, s{sFH}", f"s_lshl2_add_u32 s{sT0}, s{sRT}, s{sT0}", f"s_xor_b32 s{sT1}, s{sT0}, 1",
              f"s_mul_i32 s{sT0}, s{sT0}, 112", f"s_mul_i32 s{sT1}, s{sT1}, 112", f"s_lshl2_add_u32 s{sCNT}, s{sFT}, s{sW}",
              f"s_add_u32 s{sHS[0]}, s{sT0}, s{sCNT}", f"s_add_u32 s{sHS[1]}, s{sT1}, s{sCNT}", f"s_xor_b32 s{sCNT}, s{sCNT}, 1",
              f"s_add_u32 s{sHS[2]}, s{sT0}, s{sCNT}", f"s_add_u32 s{sHS[3]}, s{sT1}, s{sCNT}")
        for k in range(4): q.add(f"s_lshl_b32 s{sHS[k]}, s{sHS[k]}, 10")
        q.add(f"s_mov_b32 s{sM1}, 0xaaaaaaaa", f"s_mov_b32 s{sM1+1}, 0xaaaaaaaa", f"s_mov_b32 s{sM2}, 0xcccccccc", f"s_mov_b32 s{sM2+1}, 0xcccccccc", f"s_mov_b32 s{sMH}, 0", f"s_mov_b32 s{sMH+1}, -1")
        q.add(f"s_lshl1_add_u32 s{sT0}, s{sRT}, s{sTH}", f"s_lshl_b32 s{sT0}, s{sT0}, 5", f"s_lshl1_add_u32 s{sT1}, s{sFT}, s{sFH}", f"s_add_u32 s{sT0}, s{sT0}, s{sT1}",
              f"s_lshl2_add_u32 s{sT0}, s{sT0}, {WS_FL}", f"v_mov_b32 v{vFLG}, {BIG}", f"v_writelane_b32 v{vFLG}, s{sT0}, 0",
              f"v_lshlrev_b32 v{vPD}, 2, {L}", f"v_cndmask_b32 v{vPD}, 0, v{vPD}, {sp(sMH)}",
              f"s_lshl1_add_u32 s{sT0}, s{sTH}, s{sFH}", f"s_lshl2_add_u32 s{sT0}, s{sRT}, s{sT0}", f"s_lshl_b32 s{sT0}, s{sT0}, 8", f"s_add_u32 s{sT0}, s{sT0}, {WS_ST}",
              f"s_cmp_eq_u32 s{sFT}, 0", f"s_cselect_b32 s{sT0}, s{sT0}, {BIG}", f"v_lshl_add_u32 v{vST}, {L}, 3, s{sT0}", f"v_mov_b32 v47, {BIG}",
              f"v_cndmask_b32 v{vST}, v{vST}, v47, {sp(sMH)}",
              f"s_lshl2_add_u32 s{sYO}, s2, s{sW}", f"s_lshl_b32 s{sYO}, s{sYO}, 11", f"s_add_u32 s{sYO}, s{sYO}, {WS_YT}")
        q.add(f"v_and_b32 v47, 15, {L}", "v_add_u32 v56, 1, v47", "v_and_b32 v57, 3, v56", f"v_mul_u32_u24 v57, {KCP}, v57", "v_and_b32 v56, 28, v56",
              "v_lshl_add_u32 v56, v46, 3, v56", f"v_lshl_add_u32 v{cvA}, v56, 1, v57",
              f"s_mul_i32 s{sT0}, s{sFH}, {KCH}", f"s_add_u32 s{sT0}, s{sT0}, {CB}", f"s_lshl_b32 s{sT1}, s{sTH}, 8", f"s_add_u32 s{sCNT}, s{sT0}, s{sT1}", f"v_add_u32 v{cvA}, s{sCNT}, v{cvA}",
              f"s_lshl3_add_u32 s{sT0}, s{sT1}, s{sT0}", f"s_add_u32 s{sT0}, s{sT0}, 32", f"v_add_u32 v{vKW}, s{sT0}, v{vH[0]}")
        q.add(f"s_mul_i32 s{sT0}, s{sFH}, {RCH}", f"s_add_u32 s{sT0}, s{sT0}, {RB}", f"v_lshl_add_u32 v{vRZ}, {L}, 3, s{sT0}",
              f"s_lshl3_add_u32 s{sCNT}, s{sT1}, s{sT0}", f"v_add_u32 v{vRW}, s{sCNT}, v{vH[0]}",
              f"s_add_u32 s{sT0}, s{sT0}, s{sT1}", f"s_add_u32 s{sT0}, s{sT0}, 480", "v_lshlrev_b32 v56, 4, v46", "v_lshlrev_b32 v57, 5, v47", "v_sub_u32 v56, v56, v57", f"v_add_u32 v{cvB}, s{sT0}, v56")
        q.add(f"s_lshl_b32 s{sT0}, s{sFH}, 4", f"s_lshr_b32 s{sDV}, s{sDV}, s{sT0}", f"s_and_b32 s{sDV}, s{sDV}, 0xffff", f"s_cmp_eq_u32 s{sTH}, 0", f"s_cselect_b32 s{sDV}, s{sDV}, 0",
              "v_lshl_add_u32 v56, v46, 3, v47", "v_sub_u32 v56, 15, v56", "v_and_b32 v57, 1, v56", "v_lshlrev_b32 v57, 4, v57", f"v_lshlrev_b32 v57, v57, s{sDV}", "v_ashrrev_i32 v56, 1, v56")
        for e in range(4): q.add(f"v_cmp_eq_u32 vcc, {e}, v56", "s_nop 1", f"v_cndmask_b32 v{cD+e}, 0, v57, vcc")
        q.add(f"v_bfe_u32 v47, {L}, 3, 2", "v_lshl_add_u32 v56, v45, 1, v47", "v_subrev_u32 v56, 16, v56", f"s_lshl_b32 s{sT0}, s2, 13", "v_lshlrev_b32 v57, 12, v48",
              f"v_add_u32 v57, s{sT0}, v57", f"v_mov_b32 v58, {BIG}", "v_lshl_add_u32 v57, v56, 1, v57", "v_cmp_gt_i32 vcc, 0, v56", "v_add_u32 v59, 2, v57",
              f"v_mul_u32_u24 v47, {KCP}, v47", "v_cndmask_b32 v57, v57, v58, vcc", "v_cmp_gt_i32 vcc, -1, v56", f"v_mul_u32_u24 v{vFX}, {KCH}, v48", "v_lshl_add_u32 v47, v45, 2, v47",
              "v_cndmask_b32 v59, v59, v58, vcc", f"v_add_u32 v{vFX}, v{vFX}, v47", f"v_add_u32 v{vFX}, {CB}, v{vFX}",
              f"buffer_load_ushort v{vFD}, v57, {srd(rKF)}, 0 offen", f"buffer_load_ushort v84, v59, {srd(rKF)}, 0 offen")
        q.add(f"v_lshlrev_b32 v47, 3, {L}", f"s_lshl_b32 s{sT0}, s{sW}, 9", f"v_add_u32 v47, s{sT0}, v47", f"v_add_u32 v{vX1o}, {XS1}, v47", f"v_add_u32 v{vX2}, {XS2}, v47")
        for r in (vAC[0], vAC[1], vBC[0], vBC[1]): q.add(f"v_mov_b32 v{r+2}, 0", f"v_mov_b32 v{r+3}, 0")

        def xread(s, st, b):
            base = 2 * (s & 3) * SLOT
            return Ins(f"ds_read_b128 {a_(aXF(s,st,b),4)}, v{vXR(base>>16,b,st)} offset:{base & 0xffff}")
        def wread(slot, st, al, buf):
            base = slot * SLOT + st * 2048
            return [Ins(f"ds_read_b64_tr_b16 {v(vWF(buf,al)+2*e,2)}, v{vWR(base>>16,al)} offset:{(base & 0xffff) + e*512}") for e in range(2)]
        A.wait(vm=[stA[0]]); A("s_barrier")
        self.stamp(A, "a0")
        for it in [xread(0, 0, 0)] + wread(1, 0, 0, 0) + [xread(0, 0, 1)] + wread(1, 0, 1, 0): A.add(it)
        cur = []
        stB = {}; stD = {}; stE = {}
        def emit_group(g):
            c_ = 0
            for i, it in enumerate(g):
                if isinstance(it, Ins) and it.is_dma and i and ('s', 'm0') in g[i - 1].wr: c_ += 4 - self.FQ.take(A, 4)
                A.add(it); c_ += cost(it)
            return c_
        def vtake(hi_only=False):
            if VL.q and len(VL.q[0]) == 1 and isinstance(VL.q[0][0], Ins) and VL.q[0][0].is_dma: return emit_group(VL.q.pop(0))
            if V.q: return emit_group(V.q.pop(0))
            if VL.q and not hi_only: return emit_group(VL.q.pop(0))
            return 0
        self.FQ = FQ
        kstep = 0
        for c in range(7):
            for st in range(4):
                buf = kstep & 1; nb = buf ^ 1
                first = (kstep == 0)
                def M(al, b):
                    acc = v(vACC(0, al, b), 16)
                    return f"{MF32} {acc}, {v(vWF(buf,al),4)}, {a_(aXF(c,st,b),4)}, {'0' if first else acc}"
                if st < 3: nx = [xread(c, st + 1, 0), xread(c, st + 1, 1)]; sl, ns = 2 * (c & 3) + 1, st + 1
                elif c < 6: nx = [xread(c + 1, 0, 0), xread(c + 1, 0, 1)]; sl, ns = 2 * ((c + 1) & 3) + 1, 0
                else: nx = []; sl, ns = BSLOT[0], 0
                nw0 = wread(sl, ns, 0, nb); nw1 = wread(sl, ns, 1, nb)
                if st == 0 and c > 0: self.stamp(A, f"A.{c}")
                A.wait(lgkm=cur); cur = nx + nw0 + nw1
                A(M(0, 0))
                if st == 3:
                    A.wait(vm=[stA[c + 1] if c < 6 else stB[0]]); A("s_barrier")
                    if c < 3: stA[c + 4] = V.add(dma_x(c + 4) + dma_w(2 * (c & 3) + 1, c + 4))
                    else:
                        for b_ in ([0, 1], [2, 3], [4, 5], [])[c - 3]:
                            stB[b_] = V.add([f"s_add_u32 s{sWO+b_}, s{sWO+b_}, 128"] + dma_w(BSLOT[b_], b_))
                        if c == 5: FQ.flush(A)
                        for s in {5: [0, 1], 6: [2]}.get(c, []): stD[s] = V.add(dma_d(DSA[s], s))
                for it in nx[:1] + nw0: A.add(it)
                FQ.take(A, 24 - 4 * (len(nx[:1]) + 2) - vtake())
                A(M(0, 1))
                for it in nx[1:] + nw1: A.add(it)
                FQ.take(A, 24 - 4 * (len(nx[1:]) + 2))
                A(M(1, 0)); FQ.take(A, 24 - vtake())
                A(M(1, 1)); FQ.take(A, 24)
                x0 = aXF(c, st, 0); w0 = vWF(buf, 0)
                A(f"{MF4} {v(vSQ,4)}, {a_(x0,2)}, {a_(x0,2)}, {'0' if first else v(vSQ,4)}")
                A(f"{MF4} {v(vSQ2,4)}, {a_(x0+2,2)}, {a_(x0+2,2)}, {'0' if first else v(vSQ2,4)}")
                A(f"{MF16} {v(vSUM,4)}, {v(vSEL,4)}, {a_(x0,4)}, {'0' if first else v(vSUM,4)}")
                if len(V.q) > o.v3: vtake()
                A(f"{MF16} {v(vSA,4)}, {v(vSEL,4)}, {v(w0,4)}, {'0' if first else v(vSA,4)}")
                kstep += 1
        self.stamp(A, "aend")

        VL.flush(A)
        def row_consts(q, b, d):
            q.add(f"v_rcp_f32 v{vTMP}, v{d}", f"v_mul_f32 v{vIR+b}, v{d}, v{d}", f"v_mul_f32 v{vA0+b}, {fl(C0)}, v{vTMP}",
                  f"v_mul_f32 v{vA1+b}, v{vTMP}, v{vTMP}", f"v_mul_f32 v{vA1+b}, v{vA1+b}, v{vTMP}", f"v_mul_f32 v{vA1+b}, {fl(C1)}, v{vA1+b}")
        def split3(q, src, dst, t):
            q.add(f"v_cndmask_b32 v{src}, v{src}, 0, {sp(sMH)}",
                  f"v_cvt_pk_bf16_f32 v{t}, v{src}, v{src}", f"v_and_b32 v{t+1}, 0xffff0000, v{t}", f"v_sub_f32 v{src}, v{src}, v{t+1}",
                  f"v_cvt_pk_bf16_f32 v{t+2}, v{src}, v{src}", f"v_and_b32 v{t+1}, 0xffff0000, v{t+2}", f"v_sub_f32 v{src}, v{src}, v{t+1}",
                  f"v_and_b32 v{t}, 0xffff, v{t}", f"v_or_b32 v{dst}, v{t}, v{t+1}", f"v_cvt_pk_bf16_f32 v{dst+1}, v{src}, 0")
        q = FQ; T = 68
        q.add(f"v_lshl_or_b32 v{vFD}, v84, 16, v{vFD}", Skip(1))
        for e in range(4): q.add(f"v_add_f32 v{vSQ+e}, v{vSQ+e}, v{vSQ2+e}")
        q.add(f"v_cndmask_b32 v{T}, v{vSQ}, v{vSQ+1}, {sp(sM1)}", f"v_cndmask_b32 v{T+1}, v{vSQ+2}, v{vSQ+3}, {sp(sM1)}", f"v_cndmask_b32 v{T}, v{T}, v{T+1}, {sp(sM2)}",
              f"v_mul_f32 v{T+2}, {fl(-1.0/D)}, v{vSUM}", f"v_mov_b32 v{T+1}, v{T}", f"v_cvt_pk_bf16_f32 v{vBC[0]}, v{T+2}, v{T+2}", f"v_mul_f32 v{T+2}, v{T+2}, v{T+2}",
              f"v_permlane32_swap_b32 v{T}, v{T+1}", f"v_add_f32 v{T}, v{T}, v{T+1}", f"v_mov_b32 v{vBC[0]+1}, v{vBC[0]}", f"v_mov_b32 v84, v{vBC[0]}",
              f"v_mul_f32 v{T}, {fl(1.0/D)}, v{T}", f"v_sub_f32 v{T}, v{T}, v{T+2}", f"v_max_f32 v{T}, 0, v{T}",
              f"v_cvt_pk_bf16_f32 v{T}, v{T}, v{T}", f"v_and_b32 v{T}, 0xffff0000, v{T}", f"v_add_f32 v{T}, {fl(1e-5)}, v{T}", f"v_cvt_pk_bf16_f32 v{T}, v{T}, v{T}",
              f"v_and_b32 v{T}, 0xffff0000, v{T}", f"v_sqrt_f32 v{T}, v{T}")
        split3(q, vSA, vAC[0], T + 4)
        q.add(f"v_cvt_pk_bf16_f32 v{T}, v{T}, v{T}", f"v_and_b32 v85, 0xffff0000, v{T}",
              f"ds_write_b64 v{vX1o}, v[84:85]", f"ds_write_b64 v{vX1o}, {v(vAC[0],2)} offset:2048")
        row_consts(q, 0, 85)
        q.add(f"v_and_b32 v{T}, 0xffff0000, v84", f"v_mov_b32 v{T+1}, v{vTMP}")
        st_stats = q.add(f"buffer_store_dwordx2 {v(T,2)}, v{vST}, {srd(rWS)}, 0 offen sc1")
        q.add(f"v_min_u32 v{vPB}, 27, {L}", f"s_lshl_b32 s{sT0}, s{sR64}, 7", f"s_add_u32 s{sT0}, s{sT0}, {WS_FL}", f"v_lshl_add_u32 v{vPB}, v{vPB}, 2, s{sT0}")
        q.add(f"v_xor_b32 v{vX1p}, 1024, v{vX1o}", f"v_xor_b32 v{vX1o}, 512, v{vX1o}")
        ld_arr, chk_arr = self.poll_items(f"buffer_load_dword v6, v{vPD}, {srd(rDBG)}, 0 offen sc1", 6, 1, 1)

        def geglu(q, g, al, b, ob, pk=False):
            acc = vACC(g, al, b); out = vO[ob]
            def bc(r): return (v(r & ~1, 2), r & 1)
            for hf in range(2):
                G = acc + 8 * hf; U = G + 4
                if not pk:
                    for e in range(4): q.add(f"v_mul_f32 v{vT+e}, v{G+e}, v{G+e}")
                    for e in range(4): q.add(f"v_fma_f32 v{vT+e}, v{vT+e}, v{vA1+b}, v{vA0+b}")
                    for e in range(4): q.add(f"v_mul_f32 v{vT+e}, v{G+e}, v{vT+e}")
                    for e in range(4): q.add(f"v_exp_f32 v{vT+e}, v{vT+e}", f"v_mul_f32 v{vN+e}, v{G+e}, v{U+e}")
                    for e in range(4): q.add(f"v_fma_f32 v{vT+e}, v{vT+e}, v{vIR+b}, v{vIR+b}")
                    for e in range(4): q.add(f"v_rcp_f32 v{vT+e}, v{vT+e}")
                    for e in range(4): q.add(f"v_mul_f32 v{vN+e}, v{vN+e}, v{vT+e}")
                else:
                    if hf == 1: continue
                    sel3 = f"op_sel:[0,{b},{b}] op_sel_hi:[1,{b},{b}]"
                    pT, pN = 96, 104
                    E = [(pT + 4 * h_ + e, pN + 4 * h_ + e, acc + 8 * h_ + e) for h_ in range(2) for e in (0, 2)]
                    for t_, n_, g_ in E: q.add(f"v_pk_mul_f32 {v(t_,2)}, {v(g_,2)}, {v(g_,2)}")
                    for t_, n_, g_ in E: q.add(f"v_pk_fma_f32 {v(t_,2)}, {v(t_,2)}, {v(vA1,2)}, {v(vA0,2)} {sel3}")
                    for t_, n_, g_ in E: q.add(f"v_pk_mul_f32 {v(t_,2)}, {v(g_,2)}, {v(t_,2)}")
                    for t_, n_, g_ in E: q.add(f"v_pk_mul_f32 {v(n_,2)}, {v(g_,2)}, {v(g_+4,2)}")
                    for e in range(8): q.add(f"v_exp_f32 v{pT+e}, v{pT+e}")
                    for t_, n_, g_ in E: q.add(f"v_pk_fma_f32 {v(t_,2)}, {v(t_,2)}, {v(vIR,2)}, {v(vIR,2)} {sel3}")
                    for e in range(8): q.add(f"v_rcp_f32 v{pT+e}, v{pT+e}")
                    for t_, n_, g_ in E: q.add(f"v_pk_mul_f32 {v(n_,2)}, {v(n_,2)}, {v(t_,2)}")
                    for e in range(4): q.add(f"v_cvt_pk_bf16_f32 v{out+e}, v{pN+2*e}, v{pN+2*e+1}")
                    continue
                for e in range(2): q.add(f"v_cvt_pk_bf16_f32 v{out+2*hf+e}, v{vN+2*e}, v{vN+2*e+1}")
            return q.add(f"buffer_store_dwordx4 {v(out,4)}, v{vH[2*g]}, {srd(rWS)}, s{sHS[2*al+b]} offen sc1")
        def corr(g, al, b):
            acc = v(vACC(g, al, b), 16)
            return f"{MF32} {acc}, {v(vAC[al],4)}, {v(vBC[b],4)}, {acc}"
        def dread(slot, sg, dh, dst):
            base = slot * SLOT + sg * 2048
            f = a_ if dst[0] == 'a' else v
            return [Ins(f"ds_read_b64_tr_b16 {f(dst[1]+2*e,2)}, v{vDR(base>>16,dh)} offset:{(base & 0xffff) + e*512}") for e in range(2)]
        mvrd = {}
        def d_move(s):
            mvrd[s] = [it for sg in range(2) for dh in range(2) for it in dread(DSA[s], sg, dh, ('a', aWD(s, sg, dh)))]
            return [Wait(vm=[stD[s]])] + mvrd[s]
        def e_issue(vq, s, after_move):
            stE[s] = vq.add(([Wait(lgkm=mvrd[s])] if after_move else []) + [f"s_add_u32 s{sDO+s}, s{sDO+s}, {64*896}"] + dma_d(DSB[s], s))
        kA, kB, kC, kO = [128, 136], [132, 140], [144, 145], [148, 152]
        hstores = []
        MV = Fill()
        BARS = {0: [1, 2], 2: [3, 4], 4: [5], 5: [6]}
        rld = [Ins(f"buffer_load_dwordx4 {a_(224+4*u,4)}, v{vH[0]}, {srd(rWS)}, s{sRHO} offen offset:{u*1024} sc1") for u in range(2)]
        def arrived(): return list(chk_arr) + [f"s_add_u32 s{sRHO}, s{sRHO}, {WS_KVR}"] + rld
        for c in range(7):
            for st in range(4):
                buf = kstep & 1; nb = buf ^ 1
                first = (c == 0 and st == 0); last = (c == 6 and st == 3)
                def M(al, b):
                    acc = v(vACC(1, al, b), 16)
                    return f"{MF32} {acc}, {v(vWF(buf,al),4)}, {a_(aXF(c,st,b),4)}, {'0' if first else acc}"
                if st < 3: nw = wread(BSLOT[c], st + 1, 0, nb) + wread(BSLOT[c], st + 1, 1, nb)
                elif c < 6: nw = wread(BSLOT[c + 1], 0, 0, nb) + wread(BSLOT[c + 1], 0, 1, nb)
                else: nw = []
                smf = f"{MF16} {v(vSB0,4)}, {v(vSEL,4)}, {v(vWF(buf,0),4)}, {'0' if first else v(vSB0,4)}"
                if st == 0 and c > 0: self.stamp(A, f"B.{c}")
                if st == (0 if c == 5 else 1) and c >= 1: MV.add(*d_move(c - 1))
                if st == 0 and c in (2, 3): e_issue(VL, c - 2, True)
                if c == o.pollarr // 4 and st == o.pollarr % 4: V.add([ld_arr])
                if c == 6 and st == 0 and o.arrchk == 0: V.add(arrived())
                bar = (st == 3 and c in BARS)
                if bar:
                    if c == 0: FQ.flush(A)
                    if c == 5: MV.flush(A)
                A.wait(lgkm=cur, alllgkm=(bar and c in (0, 5))); cur = nw
                if last: A(smf)
                if c == 1 and st == 1:
                    FQ.flush(A)
                    for al in range(2):
                        for b in range(2): A(corr(0, al, b)); MV.take(A, 24 - (vtake() if b else 0))
                    kf = [f"s_lshl2_add_u32 s{sRHO}, s2, s{sW}", f"s_lshl_b32 s{sRHO}, s{sRHO}, 11"]
                    for u in range(2):
                        kf += [f"buffer_load_dwordx4 {v(kA[u],4)}, v{vH[0]}, {srd(rKF)}, s{sRHO} offen offset:{u*1024}",
                               f"buffer_load_dwordx4 {v(kB[u],4)}, v{vH[0]}, {srd(rKF)}, s{sRHO} offen offset:{u*1024+4}",
                               f"buffer_load_dword v{kC[u]}, v{vH[0]}, {srd(rKF)}, s{sRHO} offen offset:{u*1024+20}"]
                    kf = [Ins(t) for t in kf]
                    for al in range(2):
                        for b in range(2):
                            hstores.append(geglu(FQ, 0, al, b, b))
                            if al == 0 and b == 1: FQ.add(Call(lambda: V.add(kf)))
                A(M(0, 0))
                if bar:
                    A.wait(vm=[stB[b_] for b_ in BARS[c]]); A("s_barrier")
                    if c == 0:
                        A(f"ds_read_b64 v[84:85], v{vX1p}"); A(f"ds_read_b64 {v(vAC[1],2)}, v{vX1o} offset:2048")
                        FQ.add(Skip(3), f"v_mov_b32 v{vBC[1]}, v84", f"v_mov_b32 v{vBC[1]+1}, v84"); row_consts(FQ, 1, 85)
                    if c == 2: stB[6] = V.add([f"s_add_u32 s{sWO+6}, s{sWO+6}, 128"] + dma_w(BSLOT[6], 6))
                    for s in {0: [3], 2: [4, 5], 4: [6]}.get(c, []): stD[s] = V.add(dma_d(DSA[s], s))
                    if c in (4, 5): e_issue(VL, c - 2, False)
                    if c == 5:
                        FQ.add(Wait(vm=[kf[-1]]))
                        for u in range(2):
                            a0, b0, c0 = kA[u], kB[u], kC[u]
                            FQ.add(f"ds_write_b128 v{vKW}, {v(a0,4)} offset:{u*1024}")
                            for e, (hi, lo) in enumerate([(a0+1, a0), (a0+2, a0+1), (a0+3, a0+2), (b0+3, a0+3)]): FQ.add(f"v_alignbit_b32 v{kO[0]+e}, v{hi}, v{lo}, 16")
                            FQ.add(f"ds_write_b128 v{vKW}, {v(b0,4)} offset:{u*1024+2*KCP}")
                            for e, (hi, lo) in enumerate([(b0+1, b0), (b0+2, b0+1), (b0+3, b0+2), (c0, b0+3)]): FQ.add(f"v_alignbit_b32 v{kO[1]+e}, v{hi}, v{lo}, 16")
                            FQ.add(f"ds_write_b128 v{vKW}, {v(kO[0],4)} offset:{u*1024+KCP}", Skip(1), f"ds_write_b128 v{vKW}, {v(kO[1],4)} offset:{u*1024+3*KCP}")
                        FQ.add("v_mov_b32 v84, 0", "v_mov_b32 v85, 0", f"ds_write_b32 v{vFX}, v{vFD}", f"ds_write_b64 v{vRZ}, v[84:85] offset:4096")
                if last:
                    pre = Fill(); pre.add(Skip(1)); split3(pre, vSB0, vAC[0], vSQ); xw = pre.add(f"ds_write_b64 v{vX2}, {v(vAC[0],2)}"); pre.add(f"v_xor_b32 v{vX2}, 512, v{vX2}")
                    FQ.q = pre.q + FQ.q
                for it in nw: A.add(it)
                FQ.take(A, o.bud - 4 * len(nw))
                A(M(0, 1)); FQ.take(A, MV.take(A, 8) - 8 + o.bud - vtake())
                A(M(1, 0)); FQ.take(A, MV.take(A, 12) - 12 + o.bud)
                A(M(1, 1)); FQ.take(A, o.bud - vtake())
                if not last: A(smf); FQ.take(A, 8)
                kstep += 1
        self.stamp(A, "bend")
        while any(it is xw for it in FQ.q): FQ.take(A, 4)
        A.wait(lgkm=[xw]); A(corr(1, 0, 0)); A("s_barrier"); A(f"ds_read_b64 {v(vAC[1],2)}, v{vX2}"); A(corr(1, 0, 1))
        MV.flush(A); FQ.flush(A)
        e_issue(VL, 5, True); e_issue(VL, 4, False)
        for it in d_move(6): A.add(it)
        e_issue(VL, 6, True)
        HA = {}; HB = {}
        for s_ in range(7):
            HA[s_] = [(a_(aHA(s_,sg,tg),4), f"buffer_load_dwordx4 {a_(aHA(s_,sg,tg),4)}, v{vH[tg]}, {srd(rWS)}, s{sHO+s_} offen offset:{sg*1024} sc1") for sg in range(2) for tg in range(2)]
            HB[s_] = [(rHB(s_,sg,tg), f"buffer_load_dwordx4 {rHB(s_,sg,tg)}, v{vH[2+tg]}, {srd(rWS)}, s{sHO+s_} offen offset:{sg*1024} sc1") for sg in range(2) for tg in range(2)]
        ldB1, chkB1 = self.poll_items(f"buffer_load_dword v2, v{vPB}, {srd(rWS)}, 0 offen sc1", 2, 1, 1, 3)
        ldB2, chkB2 = self.poll_items(f"buffer_load_dword v4, v{vPB}, {srd(rWS)}, 0 offen sc1", 4, 1, 2, 3)
        hst = []
        cACC, cA, cB = 128, 160, 192
        X = Fill()
        def run_geglu(al, b):
            g = Fill(); hst.append(geglu(g, 1, al, b, b, pk=o.pk))
            while g.q: g.take(A, 28); X.take(A, 8); g.take(A, 28); (vtake() or X.take(A, 8))
        vtake(); vtake()
        self.stamp(A, "P.0")
        run_geglu(0, 0)
        self.stamp(A, "P.1")
        A(corr(1, 1, 0)); A(corr(1, 1, 1))
        if o.arrchk == 1: V.add(arrived())
        sig1 = [Wait(vm=hstores + [st_stats]), f"v_mov_b32 v{vTMP}, 1", f"buffer_store_dword v{vTMP}, v{vFLG}, {srd(rWS)}, 0 offen sc1"]
        V.add(sig1)
        run_geglu(0, 1)
        self.stamp(A, "P.2")
        rwr = [f"ds_write_b128 v{vRW}, {a_(224+4*u,4)} offset:{u*1024}" for u in range(2)]
        if o.arrchk == 0: V.flush(A); [A(t) for t in rwr]
        run_geglu(1, 0); self.stamp(A, "P.4")
        def cra(a, jj): return [Ins(f"ds_read_b64 {v(cA+4*a+2*e,2)}, v{cvA} offset:{512*a+64*jj+8*e}") for e in range(2)]
        def crb(c, jj): return [Ins(f"ds_read_b128 {v(cB+4*c,4)}, v{cvB} offset:{512*(7-c)+64*jj}")]
        rb = {}; ra = {}
        def conv_first(q):
            for c in range(7, -1, -1): rb[c] = q.add(crb(c, 0)[0])
            for a in range(8):
                for it in cra(a, 0): ra[a] = q.add(it)
        if o.arrchk == 0:
            A.wait(alllgkm=True); A("s_barrier"); conv_first(X)
            run_geglu(1, 1); X.flush(A); self.stamp(A, "P.5")
        else:
            run_geglu(1, 1); self.stamp(A, "P.5")
            V.flush(A); [A(t) for t in rwr]
            A.wait(alllgkm=True); A("s_barrier"); conv_first(A)
        self.stamp(A, "conv0")
        FQ = Fill(); self.FQ = FQ
        ld_a2, chk_a2 = self.poll_items(f"buffer_load_dword v3, v{vPD}, {srd(rDBG)}, 0 offen sc1", 3, 1, 2)
        gap = 0
        for c in range(7, -1, -1):
            if c in (7, 3): A.wait(lgkm=[rb[c - 3]])
            A(f"{MF16} {v(cACC+4*c,4)}, {v(cD,4)}, {v(cB+4*c,4)}, 0")
        for jj in range(4):
            pos = 0
            self.stamp(A, f"C.{jj}")
            for a in range(8):
                for c in range(7 - a, -1, -1):
                    if jj == 0 and pos == 0: A.wait(lgkm=[ra[7]])
                    if jj > 0:
                        if pos == 0: A.wait(lgkm=[rb[3]])
                        if pos == 5: A.wait(lgkm=[rb[1]])
                        if pos == 7: A.wait(lgkm=[ra[7]])
                    gi = jj * 36 + pos
                    if gi == o.pollb1: V.add([ldB1])
                    if gi == o.chkb1: VL.add(list(chkB1) + [t for s_ in range(7) for _, t in HA[s_]])
                    if gi == o.sig2: V.add([Wait(vm=hst), f"v_mov_b32 v{vTMP}, 2", f"buffer_store_dword v{vTMP}, v{vFLG}, {srd(rWS)}, 0 offen sc1"])
                    if gi == o.pollb2: V.add([ldB2])
                    if gi == o.pollb1: V.add([ld_a2])
                    if gi == 130: FQ.add(Wait(vm=[ld_a2]), *chk_a2)
                    acc = v(cACC + 4 * (a + c), 4)
                    A(f"{MF16} {acc}, {v(cA+4*a,4)}, {v(cB+4*c,4)}, {acc}")
                    n = 0
                    if jj < 3:
                        if c == 7 - a: rb[c] = A.add(crb(c, jj + 1)[0]); n += 1
                        if c == 0:
                            for it in cra(a, jj + 1): ra[a] = A.add(it); n += 1
                    gap += 1
                    if gap >= o.cgap and n == 0:
                        if vtake(): gap = 0
                        else: FQ.take(A, 8)
                    elif n == 0: FQ.take(A, 8)
                    pos += 1
        FQ.flush(A)
        self.stamp(A, "conv1")
        def fACC(tg, dh): return 160 + (tg * 2 + dh) * 16
        cS, cR = 224, 6
        FQ = Fill()
        FQ.add(f"s_add_u32 s{sT0}, s{sLW}, {CB}", f"v_add_u32 v{cR}, s{sT0}, v{vH[0]}", f"v_xor_b32 v{cR+1}, 4096, v{cR}", f"s_cmp_eq_u32 s{sTH}, 1", f"s_cselect_b64 {sp(sM1)}, -1, 0", "s_barrier")
        for r in range(16):
            FQ.add(f"v_cndmask_b32 v{cS+r}, v{cACC+16+r}, v{cACC+r}, {sp(sM1)}", f"v_cndmask_b32 v{cACC+r}, v{cACC+r}, v{cACC+16+r}, {sp(sM1)}")
            if r % 4 == 3: FQ.add(f"ds_write_b128 v{cR}, {v(cS+r-3,4)} offset:{(r//4)*1024}")
        FQ.add(f"v_and_b32 v{cR+2}, 15, {L}", f"v_lshrrev_b32 v{cR+3}, 4, {L}", f"v_lshlrev_b32 v{cR+3}, 3, v{cR+3}", f"v_lshl_add_u32 v{cR+2}, v{cR+2}, 5, v{cR+3}",
               Skip(2), Wait(alllgkm=True), "s_barrier")
        for k in range(4): FQ.add(f"ds_read_b128 {v(cS+4*k,4)}, v{cR+1} offset:{k*1024}")
        FQ.add(Skip(3))
        yst = []
        for k in range(4):
            for r in range(4): FQ.add(f"v_add_f32 v{cACC+4*k+r}, v{cACC+4*k+r}, v{cS+4*k+r}")
            FQ.add(f"v_cvt_pk_bf16_f32 v{cACC+16+2*k}, v{cACC+4*k}, v{cACC+4*k+1}", f"v_cvt_pk_bf16_f32 v{cACC+16+2*k+1}, v{cACC+4*k+2}, v{cACC+4*k+3}")
            FQ.add(f"v_min_u32 v{cACC+16+2*k}, -2, v{cACC+16+2*k}")
            yst.append(FQ.add(f"buffer_store_dwordx2 {v(cACC+16+2*k,2)}, v{cR+2}, {srd(rWS)}, s{sYO} offen offset:{k*512} sc1"))
        eX, eST, eY, eP, eXF, eOF = 128, 136, 224, 140, 14, 30
        eR, eC, eA, eB = 232, 233, 234, 235
        EQ = Fill()
        EQ.add(f"v_lshrrev_b32 v{eR}, 3, {L}", f"v_and_b32 v{eC}, 7, {L}",
               f"s_lshl3_add_u32 s{sT0}, s{sR64}, s{sW}", f"s_lshl_b32 s{sT0}, s{sT0}, 3", f"v_add_u32 v{eA}, s{sT0}, v{eR}",
               f"v_mul_u32_u24 v{eOF}, 896, v{eA}", f"s_lshl_b32 s{sT1}, s{sDT}, 7", f"v_lshl_add_u32 v{eOF}, v{eC}, 4, v{eOF}", f"v_add_u32 v{eOF}, s{sT1}, v{eOF}",
               f"v_add_u32 v{eOF+1}, {32*896}, v{eOF}", f"v_lshlrev_b32 v{eA}, 3, v{eA}", f"v_add_u32 v{eA}, {WS_ST}, v{eA}")
        stl = [f"buffer_load_dwordx2 {v(eST+2*tg,2)}, v{eA}, {srd(rWS)}, 0 offen offset:{tg*256} sc1" for tg in range(2)]
        EQ.add(Call(lambda: V.add(stl + [f"buffer_load_dwordx4 {v(eX+4*tg,4)}, v{eOF+tg}, {srd(rX)}, 0 offen" for tg in range(2)])))
        EQ.add(f"s_lshl2_add_u32 s{sRHO}, s{sDT}, s{sW}", f"s_lshl_b32 s{sRHO}, s{sRHO}, 16", f"s_lshl_b32 s{sT1}, s{sR64}, 7", f"s_add_u32 s{sRHO}, s{sRHO}, s{sT1}", f"s_add_u32 s{sRHO}, s{sRHO}, {WS_YT}",
               f"v_lshlrev_b32 v{eB}, 12, v{eR}", f"v_lshl_add_u32 v{eB}, v{eC}, 4, v{eB}", f"v_add_u32 v{eB+1}, 32768, v{eB}")
        yl = [f"buffer_load_dwordx4 {v(eY+4*u,4)}, v{eB+u}, {srd(rWS)}, s{sRHO} offen sc1" for u in range(2)]
        EQ.add(f"v_and_b32 v10, 31, {L}", f"v_lshrrev_b32 v11, 5, {L}", "v_lshlrev_b32 v11, 2, v11", f"v_xor_b32 v11, v11, v{eC}", "v_lshlrev_b32 v11, 4, v11", "v_lshl_add_u32 v11, v10, 8, v11",
               f"s_lshl_b32 s{sT0}, s{sW}, 13", f"v_add_u32 v10, s{sT0}, v11")
        for j in range(1, 4): EQ.add(f"v_xor_b32 v{10+j}, {16*j}, v10")
        EQ.add(f"s_lshl_b32 s{sT0}, s{sW}, 11", f"v_lshlrev_b32 v32, 1, v{eC}", f"v_xor_b32 v32, v32, v{eR}", "v_lshlrev_b32 v32, 4, v32", f"v_lshl_add_u32 v32, v{eR}, 8, v32",
               f"v_add_u32 v32, s{sT0}, v32", "v_xor_b32 v33, 16, v32")
        YB = CB + 32768
        self.FQ = FQ
        pr = 44
        LOG2E = 1.4426950408889634
        def pwrite(tg): return [Ins(f"ds_write_b128 v{10+j}, {v(fACC(tg,dh)+4*j,4)} offset:{tg*32768+dh*128}") for dh in range(2) for j in range(4)]
        def pread(tg, b): return [Ins(f"ds_read_b128 {v(b+ww*8+4*j,4)}, v{32+j} offset:{tg*32768+ww*8192}") for ww in range(4) for j in range(2)]
        def finish(q, tg, b, pk):
            if pk:
                for e in range(0, 8, 2): q.add(f"v_pk_add_f32 {v(b+e,2)}, {v(b+e,2)}, {v(b+8+e,2)}")
                for e in range(0, 8, 2): q.add(f"v_pk_add_f32 {v(b+16+e,2)}, {v(b+16+e,2)}, {v(b+24+e,2)}")
                for e in range(0, 8, 2): q.add(f"v_pk_add_f32 {v(b+e,2)}, {v(b+e,2)}, {v(b+16+e,2)}")
            else:
                for e in range(8): q.add(f"v_add_f32 v{b+e}, v{b+e}, v{b+8+e}")
                for e in range(8): q.add(f"v_add_f32 v{b+16+e}, v{b+16+e}, v{b+24+e}")
                for e in range(8): q.add(f"v_add_f32 v{b+e}, v{b+e}, v{b+16+e}")
            for e in range(8): q.add(f"v_mul_f32 v{b+8+e}, {fl(-LOG2E)}, v{b+e}")
            for e in range(8): q.add(f"v_exp_f32 v{b+8+e}, v{b+8+e}")
            if pk:
                for e in range(0, 8, 2): q.add(f"v_pk_mul_f32 {v(b+e,2)}, {v(b+e,2)}, {v(eP+8*tg+e,2)}")
                for e in range(0, 8, 2): q.add(f"v_pk_add_f32 {v(b+8+e,2)}, {v(b+8+e,2)}, 1.0 op_sel_hi:[1,0]")
            else:
                for e in range(8): q.add(f"v_mul_f32 v{b+e}, v{b+e}, v{eP+8*tg+e}")
                for e in range(8): q.add(f"v_add_f32 v{b+8+e}, 1.0, v{b+8+e}")
            for e in range(8): q.add(f"v_rcp_f32 v{b+8+e}, v{b+8+e}")
            if pk:
                for e in range(0, 8, 2): q.add(f"v_pk_fma_f32 {v(b+e,2)}, {v(b+e,2)}, {v(b+8+e,2)}, {v(eXF+8*tg+e,2)}")
            else:
                for e in range(8): q.add(f"v_fma_f32 v{b+e}, v{b+e}, v{b+8+e}, v{eXF+8*tg+e}")
            for e in range(4): q.add(f"v_cvt_pk_bf16_f32 v{b+16+e}, v{b+2*e}, v{b+2*e+1}")
            q.add(f"buffer_store_dwordx4 {v(b+16,4)}, v{eOF+tg}, {srd(rOUT)}, 0 offen {o.outfl.replace('_', ' ')}".rstrip())
        ML = [(0, s, sg, tg, dh) for s in range(7) for sg in range(2) for (tg, dh) in ((0, 0), (1, 0), (0, 1), (1, 1))]
        ML += [(1, s, sg, tg, dh) for tg in range(2) for s in range(7) for sg in range(2) for dh in range(2)]
        hbl = [HB[s][sg * 2 + tg][1] for tg in range(2) for s in range(7) for sg in range(2)]
        MV = Fill(); emv = []
        def issued(t): return any(isinstance(x, Ins) and x.text == t for x in A.items)
        for m, (g, s, sg, tg, dh) in enumerate(ML):
            if m and m % 8 == 0: self.stamp(A, f"F.{m//4}")
            if m == 0: FQ.q += EQ.q
            if m % 8 == 0 and 8 <= m <= 56:
                e = m // 8 - 1
                r = [it for sg_ in range(2) for dh_ in range(2) for it in dread(DSB[e], sg_, dh_, ('a', aWD(e, sg_, dh_)))]
                MV.add(Wait(vm=[stE[e]]), *r); emv += r
            if m == 4 * (o.pollb2 - 144): V.add([ldB2])
            if m == 4 * o.chkb2: VL.add(list(chkB2) + hbl)
            if m == 4 * o.yld: V.add(yl)
            if m == 4 * o.xpre:
                for tg_ in range(2):
                    for e in range(4):
                        FQ.add(f"v_lshlrev_b32 v{eXF+8*tg_+2*e}, 16, v{eX+4*tg_+e}", f"v_and_b32 v{eXF+8*tg_+2*e+1}, 0xffff0000, v{eX+4*tg_+e}")
                    for e in range(8): FQ.add(f"v_add_f32 v{eP+8*tg_+e}, v{eXF+8*tg_+e}, v{eST+2*tg_}")
                    for e in range(8): FQ.add(f"v_mul_f32 v{eP+8*tg_+e}, v{eP+8*tg_+e}, v{eST+2*tg_+1}")
                FQ.add(f"s_lshl_b32 s{sT0}, s{sW}, 1", f"v_xor_b32 v{eA}, s{sT0}, v{eC}", f"v_lshlrev_b32 v{eA}, 4, v{eA}", f"v_lshl_add_u32 v{eA}, v{eR}, 7, v{eA}",
                       f"s_lshl_b32 s{sT0}, s{sW}, 11", f"s_add_u32 s{sT0}, s{sT0}, {YB}", f"v_add_u32 v{eA}, s{sT0}, v{eA}", f"v_xor_b32 v237, 16, v{eA}")
                FQ.add(f"v_xor_b32 v252, s{sW}, v{eC}", "v_lshlrev_b32 v252, 4, v252", f"v_lshl_add_u32 v252, v{eC}, 10, v252", f"v_lshl_add_u32 v252, v{eR}, 1, v252",
                       f"v_add_u32 v252, {YB}, v252", "v_xor_b32 v253, 64, v252")
                for e in range(16): FQ.add(f"v_mov_b32 v{112+e}, 0")
            if m == 84:
                FQ.flush(A); MV.flush(A); A.wait(lgkm=emv); A("s_barrier")
                pw = pwrite(0); FQ.add(Skip(2))
                for it in pw: FQ.add(it, Skip(1))
                V.flush(A)
                ywr = [Ins(f"ds_write_b128 v{eA}, {v(eY,4)}"), Ins(f"ds_write_b128 v237, {v(eY+4,4)} offset:1024")]
                FQ.add(*self.tag_check(yl, [f"v{eY}", f"v{eY+4}"], 238)); FQ.add(*ywr); FQ.add(Skip(2), Wait(lgkm=pw + ywr), "s_barrier")
                FQ.add(*pread(0, pr))
                for e in range(8): FQ.add(f"ds_read_u16_d16_hi v{112+e}, v252 offset:{e*128}")
                for e in range(8): FQ.add(f"ds_read_u16_d16_hi v{120+e}, v253 offset:{e*128}")
                for e in range(16): FQ.add(f"v_mul_f32 v{eP+e}, v{eP+e}, v{112+e}")
                finish(FQ, 0, pr, False)
            t_ = (HA if g == 0 else HB)[s][sg * 2 + tg]
            while not issued(t_[1]): assert vtake()
            acc = v(fACC(tg, dh), 16)
            if g == 1 and m < 84: assert not any(it in MV.q for it in emv[8 * s: 8 * s + 8])
            A(f"{MF32} {acc}, {a_(aWD(s, sg, dh), 4)}, {t_[0]}, {'0' if m < 4 else acc}")
            bud = o.bud
            if m & 1: bud -= vtake()
            else: bud = MV.take(A, 8) - 8 + bud
            FQ.take(A, bud)
        self.stamp(A, "f2end")
        pw = Fill(); pw.add(*pwrite(1))
        FQ.take(A, 40)
        while pw.q: pw.take(A, 4); FQ.take(A, 24)
        A.wait(alllgkm=True); A("s_barrier")
        for it in pread(1, pr + 32): A.add(it)
        FQ.flush(A)
        finish(A, 1, pr + 32, True)
        self.stamp(A, "end")
        if o.diagspin:
            A.raw("L_spin:"); A("s_memrealtime s[18:19]"); A("s_waitcnt lgkmcnt(0)"); A("s_sub_u32 s18, s18, s3"); A(f"s_cmp_lt_u32 s18, {o.diagspin}"); A("s_cbranch_scc1 L_spin")
        if o.ts:
            A("v_writelane_b32 v0, s3, 0")
            A(f"v_lshlrev_b32 v2, 2, {L}"); A(f"s_lshl2_add_u32 s{sT0}, s2, s{sW}"); A(f"s_lshl_b32 s{sT0}, s{sT0}, 8"); A(f"s_add_u32 s{sT0}, s{sT0}, {WS_TS}")
            A(f"buffer_store_dword v0, v2, {srd(rWS)}, s{sT0} offen")
            if o.dbgts:
                A("v_add_u32 v2, 8, v2"); A(f"v_mov_b32 v3, {BIG}"); A(f"v_cmp_gt_u32 vcc, {self.nts+1}, {L}"); A("v_cndmask_b32 v2, v3, v2, vcc")
                A(f"buffer_atomic_umax v0, v2, {srd(rDBG)}, 0 offen sc1")
                A("s_not_b32 s3, s3"); A("v_mov_b32 v4, s3"); A("v_writelane_b32 v3, 4, 0"); A(f"buffer_atomic_umax v4, v3, {srd(rDBG)}, 0 offen sc1")
        A("s_endpgm")
        return A

    def helper(self):
        o = self.opt
        A = Asm(); L = f"v{vL}"
        A.raw("L_helper:")
        A("s_waitcnt lgkmcnt(0)")
        rK, rV, rSH = 32, 36, 40
        sHW = 60
        hn = [1]
        def hst(name):
            if not o.hts: return
            hn[0] += 1; A(f"{o.clk} s[64:65]"); A("s_waitcnt lgkmcnt(0)"); A(f"s_mov_b32 s{66+hn[0]}, s64")
        hst("karg")
        self.mksrd(A, rK, sK, S * D * 2); self.mksrd(A, rV, sV, S * D * 2); self.mksrd(A, rSH, sSH, D * 8)
        self.mksrd(A, rWS, sWS, WS_SIZE); self.mksrd(A, rDBG, sDBG, 256)
        A(f"s_sub_u32 s{sHW}, s2, 224")
        A(f"s_or_b32 s{sT0}, s{sHW}, s{sW}"); A(f"s_cmp_eq_u32 s{sT0}, 0"); A(f"s_cselect_b32 s{sT3}, 0, {BIG}"); A(f"s_add_u32 s{sT0}, s{sT3}, {WS_FL}")
        A(f"v_lshl_add_u32 v2, {L}, 4, s{sT0}")
        for e in range(4): A(f"v_mov_b32 v{4+e}, 0")
        clr = [A(f"buffer_store_dwordx4 v[4:7], v2, {srd(rWS)}, 0 offen offset:{m*1024} sc1") for m in range(4)]
        A(f"s_lshl_b32 s{sT0}, s{sHW}, 6"); A(f"s_lshl_b32 s{sT1}, s{sW}, 4"); A(f"s_add_u32 s{sT0}, s{sT0}, s{sT1}"); A(f"s_mul_i32 s{sT0}, s{sT0}, 896")
        A(f"v_lshl_add_u32 v8, {L}, 4, s{sT0}")
        for g in range(1, 4): A(f"v_add_u32 v{8+g}, {g*3584}, v8")
        for r in range(3): A(f"v_subrev_u32 v{12+r}, {(3-r)*896}, v8")
        SHR, KR, VR, WW, KW, VT, AC = 16, 32, 108, 172, 204, 236, 240
        A(f"v_lshlrev_b32 v15, 4, v0"); A(f"s_lshl_b32 s{sT0}, s{sW}, 10"); A(f"s_add_u32 m0, s{sT0}, 65536")
        shd = A(f"buffer_load_dwordx4 v15, {srd(rSH)}, 0 offen lds")
        LQ = []
        for r in range(3): LQ.append(f"buffer_load_dwordx4 {v(KR+4*r,4)}, v{12+r}, {srd(rK)}, 0 offen")
        for t in range(16):
            LQ.append(f"buffer_load_dwordx4 {v(KR+4*(t+3),4)}, v{8+(t>>2)}, {srd(rK)}, 0 offen offset:{(t&3)*896}")
            LQ.append(f"buffer_load_dwordx4 {v(VR+4*t,4)}, v{8+(t>>2)}, {srd(rV)}, 0 offen offset:{(t&3)*896}")
        for _ in range(o.hpre): A(LQ.pop(0))
        A(f"v_lshlrev_b32 v15, 6, {L}"); A("v_add_u32 v15, 65536, v15")
        A.wait(vm=[shd]); A("s_barrier")
        for m in range(4): A(f"ds_read_b128 {v(SHR+4*m,4)}, v15 offset:{16*m}")
        hst("issued")
        A(f"v_mov_b32 v2, {BIG}"); A(f"v_writelane_b32 v2, s{sT3}, 0"); A("v_mov_b32 v7, 2")
        A.wait(vm=clr); A(f"buffer_store_dword v7, v2, {srd(rDBG)}, 0 offen sc1")
        A("s_mov_b32 s61, 0xffff0000")
        A(f"s_sub_u32 s{sT0}, 3, s{sW}"); A(f"s_lshl_b32 s{sT0}, s{sT0}, 1"); A(f"v_and_b32 v4, 7, {L}"); A(f"v_xor_b32 v5, s{sT0}, v4")
        A("v_lshlrev_b32 v5, 4, v5"); A(f"v_lshl_add_u32 v5, {L}, 10, v5"); A("v_xor_b32 v6, 16, v5")
        for d in range(8):
            for pr_ in range(2):
                src = SHR + 2 * d + pr_
                A(f"v_lshlrev_b32 v{WW+8*(2*pr_)+d}, 16, v{src}"); A(f"v_and_b32 v{WW+8*(2*pr_+1)+d}, s61, v{src}")
        def unpk(r):
            for e in range(4):
                A(f"v_lshlrev_b32 v{KW+8*(r&3)+2*e}, 16, v{KR+4*r+e}"); A(f"v_and_b32 v{KW+8*(r&3)+2*e+1}, s61, v{KR+4*r+e}")
        for r in range(3): unpk(r)
        hst("first")
        O = SHR
        for t in range(16):
            unpk(t + 3)
            if LQ: A(LQ.pop(0))
            ac = AC + 8 * (t & 1)
            for i in range(4):
                for e in range(4):
                    kw = v(KW + 8 * ((t + 3 - i) & 3) + 2 * e, 2); ww = v(WW + 8 * i + 2 * e, 2)
                    if i == 0: A(f"v_pk_mul_f32 {v(ac+2*e,2)}, {kw}, {ww}")
                    else: A(f"v_pk_fma_f32 {v(ac+2*e,2)}, {kw}, {ww}, {v(ac+2*e,2)}")
            if LQ: A(LQ.pop(0))
            for e in range(4):
                vt = VT + 2 * (e & 1)
                A(f"v_lshlrev_b32 v{vt}, 16, v{VR+4*t+e}"); A(f"v_and_b32 v{vt+1}, s61, v{VR+4*t+e}")
                A(f"v_pk_mul_f32 {v(ac+2*e,2)}, {v(ac+2*e,2)}, {v(vt,2)}")
            if t & 1:
                dw = 3 - ((t & 7) >> 1)
                for d in range(8): A(f"v_cvt_pk_bf16_f32 v{O+4*d+dw}, v{AC+8+d}, v{AC+d}")
            if (t & 7) == 7:
                for d in range(8): A(f"ds_write_b128 v{6 if t < 8 else 5}, {v(O+4*d,4)} offset:{d*128}")
        hst("computed")
        A(f"v_lshrrev_b32 v10, 3, {L}"); A("v_lshlrev_b32 v11, 12, v10"); A("v_lshl_add_u32 v11, v4, 4, v11")
        A(f"s_mul_i32 s{sT0}, s{sW}, 14")
        A(f"s_lshl_b32 s{sT1}, s{sHW}, 7"); A(f"s_sub_u32 s{sT1}, {WS_KVR+3968}, s{sT1}"); A(f"s_lshl_b32 s{sT2}, s{sT0}, 15"); A(f"s_add_u32 s{sT1}, s{sT1}, s{sT2}")
        A(f"s_lshl_b32 s{sT2}, s{sT0}, 10"); A(f"v_lshl_add_u32 v10, v10, 7, s{sT2}")
        A.wait(alllgkm=True); A("s_barrier")
        for m in range(14):
            A(f"s_add_u32 s{sT2}, s{sT0}, {m}"); A(f"s_and_b32 s{sT2}, s{sT2}, 7"); A(f"v_xor_b32 v12, s{sT2}, v4"); A("v_lshl_add_u32 v12, v12, 4, v10")
            A(f"ds_read_b128 {v(32+4*m,4)}, v12 offset:{m*1024}")
        hst("ldsrd")
        sts = []
        for m in range(14):
            sts.append(A(f"buffer_store_dwordx4 {v(32+4*m,4)}, v11, {srd(rWS)}, s{sT1} offen sc1"))
            A(f"s_add_u32 s{sT1}, s{sT1}, 32768")
        A(f"s_lshl2_add_u32 s{sT0}, s{sHW}, 128"); A(f"s_cmp_eq_u32 s{sW}, 0"); A(f"s_cselect_b32 s{sT0}, s{sT0}, {BIG}")
        A(f"v_mov_b32 v2, {BIG}"); A(f"v_writelane_b32 v2, s{sT0}, 0")
        hst("stissued")
        A(f"s_lshl2_add_u32 s{sT0}, s{sHW}, s{sW}"); A(f"s_mul_i32 s{sT0}, s{sT0}, 14336"); A(f"s_add_u32 s{sT0}, s{sT0}, {WS_YT}"); A(f"v_lshlrev_b32 v3, 4, {L}")
        for e in range(4): A(f"v_mov_b32 v{AC+e}, -1")
        A("v_mov_b32 v8, 1")
        A.wait(allvm=True); A("s_barrier"); A(f"buffer_store_dword v8, v2, {srd(rDBG)}, 0 offen sc1")
        if o.ts: A(f"{o.clk} s[62:63]")
        for m in range(14):
            A(f"buffer_store_dwordx4 {v(AC,4)}, v3, {srd(rWS)}, s{sT0} offen offset:{(m&1)*1024} sc1")
            if m & 1: A(f"s_add_u32 s{sT0}, s{sT0}, 2048")
        A.wait(allvm=True); A("s_barrier"); A(f"buffer_store_dword v7, v2, {srd(rDBG)}, 0 offen sc1")
        if o.ts:
            A("s_waitcnt lgkmcnt(0)"); A("v_mov_b32 v4, s62"); A("v_writelane_b32 v4, s30, 0")
            for k in range(2, hn[0] + 1): A(f"v_writelane_b32 v4, s{66+k}, {k}")
            if True: A(f"v_lshlrev_b32 v2, 2, v0"); A(f"s_lshl_b32 s{sT0}, s2, 10"); A(f"s_add_u32 s{sT0}, s{sT0}, {WS_TS}")
            A(f"buffer_store_dword v4, v2, {srd(rWS)}, s{sT0} offen")
        A("s_endpgm")
        return A

    def build(self):
        A = self.entry()
        self.main(A)
        t_main = A.finalize(); H = self.helper(); t_help = H.finalize()
        sys.stderr.write(f"main: {A.stats}  helper: {H.stats}\n")
        head = open(self.opt.ref).read().split("; Override launch")[0]
        txt = head + f"; @launch grid=(256,1,1) block=(256,1,1) lds={LDS_BYTES}\n"
        txt += f'.amdgcn_target "amdgcn-amd-amdhsa--gfx950"\n.text\n.globl {NAME}_kernel\n.p2align 8\n.type {NAME}_kernel,@function\n{NAME}_kernel:\n'
        txt += t_main + "\n" + t_help + "\n" + "\n".join(self.slow) + "\nL_exit:\n    s_endpgm\n"
        txt += f""".section .rodata,"a"
.p2align 6
.amdhsa_kernel {NAME}_kernel
  .amdhsa_next_free_vgpr 512
  .amdhsa_next_free_sgpr 102
  .amdhsa_accum_offset 256
  .amdhsa_group_segment_fixed_size 0
  .amdhsa_kernarg_size 104
  .amdhsa_user_sgpr_count 2
  .amdhsa_user_sgpr_kernarg_segment_ptr 1
  .amdhsa_system_sgpr_workgroup_id_x 1
  .amdhsa_float_denorm_mode_32 3
.end_amdhsa_kernel
"""
        if self.opt.ts: txt = txt.replace("; @launch", "; stamps: " + ",".join(self.tsnames) + ("\n; clk=cycles" if self.opt.clk == "s_memtime" else "") + "\n; @launch", 1)
        return txt

if __name__ == "__main__":
    p = argparse.ArgumentParser()
    p.add_argument("-o", default=f"cdna_kernels/{NAME}.s")
    p.add_argument("--ref", default=f"cdna_kernels/{NAME}.s.ref")
    p.add_argument("--ts", default="")
    p.add_argument("--clk", default="s_memrealtime")
    p.add_argument("--pre_gap", type=int, default=14)
    p.add_argument("--pre2", type=int, default=0)
    p.add_argument("--v3", type=int, default=4)
    p.add_argument("--cgap", type=int, default=4)
    p.add_argument("--pk", type=int, default=1)
    p.add_argument("--nopoll", action="store_true")
    p.add_argument("--yld", type=int, default=17)
    p.add_argument("--xpre", type=int, default=12)
    p.add_argument("--probe0", type=int, default=0)
    p.add_argument("--pollb1", type=int, default=8)
    p.add_argument("--chkb1", type=int, default=50)
    p.add_argument("--sig2", type=int, default=95)
    p.add_argument("--pollb2", type=int, default=144)
    p.add_argument("--chkb2", type=int, default=8)
    p.add_argument("--pollarr", type=int, default=24)
    p.add_argument("--arrchk", type=int, default=1)
    p.add_argument("--bud", type=int, default=24)
    p.add_argument("--hts", type=int, default=0)
    p.add_argument("--hpre", type=int, default=17)
    p.add_argument("--slp", type=int, default=4)
    p.add_argument("--dbgts", type=int, default=0)
    p.add_argument("--outfl", default="")
    p.add_argument("--diagspin", type=int, default=0)
    p.add_argument("--rot", type=int, default=6)
    p.add_argument("--pf", type=int, default=0)
    o = p.parse_args()
    open(o.o, "w").write(Gen(o).build())
```

```python
import sys, argparse
from asmfw import Asm, Ins, Wait, Raw

NAME = "recurrent_scan__ssm_conv_h3__glu_gated_geglu__prompt"
S, D, F = 2048, 448, 1792
WS_H, WS_KVR, WS_YT, WS_ST, WS_FL, WS_TS = 0, 8 << 20, 10 << 20, 12 << 20, 13 << 20, 14 << 20
WS_SIZE = 15 << 20
FL_B, FL_C, FL_A = 0, 4096, 4096 + 7 * 512
BIG = 0x7f000000
SLOT = 16384
CB = 8 * SLOT
KCH, KCP = 8320, 4160
RB, RCH = CB + 16640, 4608
XS2 = CB + 26624
XS1 = CB + 28672
BSLOT = [6, 7, 0, 6, 1, 7, 0]
DSA = [1, 2, 3, 4, 5, 2, 3]
DSB = [4, 5, 2, 3, 6, 1, 7]
LDS_BYTES = 163840
sX, sK, sV, sSH, sKF, sD, sWG, sWU, sWD, sOUT, sDBG, sWS = 4, 6, 8, 10, 12, 14, 18, 20, 22, 24, 26, 28
rX, rW, rWD, rWS, rKF, rOUT, rDBG = 32, 36, 40, 44, 48, 52, 56
sXO, sWO, sDO, sHO = 60, 67, 74, 81
sW, sLW, sRT, sFT, sRHO, sI, sJ, sT0, sT1, sT2, sT3 = 88, 89, 90, 91, 92, 93, 94, 95, 96, 97, 98
sM1, sM2, sMH = 16, 30, 0
sDV, sCNT = 99, 100
sHS = [6, 7, 8, 9]
sR64, sDT, sYO, sT64, sLV1, sLV2 = 10, 11, 101, 15, 4, 5
def srd(r): return f"s[{r}:{r+3}]"
def v(a, n=1): return f"v{a}" if n == 1 else f"v[{a}:{a+n-1}]"
def a_(a, n=1): return f"a{a}" if n == 1 else f"a[{a}:{a+n-1}]"
def sp(a): return f"s[{a}:{a+1}]"
vL = 1
vXD, vWD_, vDD = 2, 6, 10
def vXR(st, b, s): return 68 + st * 8 + b * 4 + s
def vWR(st, al): return 30 + st * 2 + al if st < 2 else 2 + al
def vDR(st, dh): return 34 + st * 2 + dh
vH = [40, 41, 42, 43]
vA0, vA1, vIR = 44, 46, 48
vFLG = 50
vTMP = 51
vAC = [52, 56]; vBC = [60, 64]
vT, vN = 68, 72
vO = [76, 80]
vSEL = 92; vSUM, vSQ, vSA, vSB0, vSQ2 = 96, 100, 104, 108, 88
def vWF(buf, al): return 112 + buf * 8 + al * 4
def vACC(g, al, be): return 128 + g * 64 + (2 * al + be) * 16
def aXF(s, st, be): return s * 32 + (st * 2 + be) * 4
def aWD(s, sg, dh): return s * 16 + (sg * 2 + dh) * 4
def aHA(s, sg, tg): return 112 + s * 16 + (sg * 2 + tg) * 4
HB_REGS = [v(44 + 4 * i, 4) for i in range(17)] + [a_(224 + 4 * i, 4) for i in range(8)] + [v(240 + 4 * i, 4) for i in range(3)]
def rHB(s, sg, tg): return HB_REGS[tg * 14 + s * 2 + sg]

C0 = -2.0 * 0.7978845608028654 * 1.4426950408889634
C1 = C0 * 0.044715
import struct
def fl(x): return "0x%08x" % struct.unpack("<I", struct.pack("<f", x))[0]

MF32 = "v_mfma_f32_32x32x16_bf16"
MF16 = "v_mfma_f32_16x16x32_bf16"
MF4 = "v_mfma_f32_4x4x4_16b_bf16"

def cost(it):
    if isinstance(it, str): it = Ins(it)
    if not isinstance(it, Ins): return 0
    return 8 if it.kind == 'trans' else 4

class Call:
    def __init__(self, fn): self.fn = fn

class Skip:
    def __init__(self, n): self.n = n

class Fill:
    def __init__(self): self.q = []
    def add(self, *its):
        r = None
        for it in its:
            if isinstance(it, str): it = Ins(it)
            self.q.append(it); r = it
        return r
    def take(self, A, budget):
        while self.q:
            if isinstance(self.q[0], Skip):
                if budget < (1 << 20) and self.q[0].n > 0: self.q[0].n -= 1; break
                self.q.pop(0); continue
            c = cost(self.q[0])
            if c > budget and c > 0: break
            it = self.q.pop(0); budget -= c
            if isinstance(it, Call): it.fn()
            else: A.add(it)
            if isinstance(it, Ins) and it.op.startswith(('s_cmp', 's_bitcmp')):
                assert self.q[0].op.startswith('s_cselect')
                while self.q and isinstance(self.q[0], Ins) and self.q[0].op.startswith('s_cselect'):
                    A.add(self.q.pop(0)); budget -= 4
            if isinstance(it, Ins) and it.op.startswith('v_cmp') and self.q and isinstance(self.q[0], Ins) and self.q[0].op.startswith(('s_cbranch', 's_nop')):
                A.add(self.q.pop(0)); budget -= 4
        return budget
    def flush(self, A):
        while self.q: self.take(A, 1 << 20)

class VQ:
    def __init__(self): self.q = []
    def add(self, its):
        its = [Ins(i) if isinstance(i, str) else i for i in its]
        g = []
        for it in its:
            g.append(it)
            if isinstance(it, Ins) and it.kind == 'vmem': self.q.append(g); g = []
        if g: self.q.append(g)
        return its[-1]
    def pause(self, n): self.q += [[] for _ in range(n)]
    def take(self, A):
        if not self.q: return 0
        g = self.q.pop(0)
        for it in g: A.add(it)
        return sum(cost(i) for i in g)
    def flush(self, A):
        while self.q: self.take(A)

class Gen:
    def __init__(self, opt):
        self.opt = opt; self.slow = []; self.nslow = 0; self.nts = 0
    def mksrd(self, A, r, p, size):
        A(f"s_mov_b32 s{r}, s{p}"); A(f"s_mov_b32 s{r+1}, s{p+1}"); A(f"s_mov_b32 s{r+2}, {size}"); A(f"s_mov_b32 s{r+3}, 0x20000")
    def stamp(self, A, name):
        if not self.opt.ts: return
        sel = self.opt.ts.split(',')
        if not (name in sel or ('all' in sel and '.' not in name) or name.split('.')[0] + '.*' in sel): return
        k = self.nts; self.nts += 1
        self.tsnames.append(name)
        if self.opt.nbts:
            if k: A.raw(f"    v_writelane_b32 v0, s{18 + 2 * ((k - 1) & 1)}, {k}")
            A.raw(f"    {self.opt.clk} s[{18 + 2 * (k & 1)}:{19 + 2 * (k & 1)}]")
            if name == "end": A.raw("    s_waitcnt lgkmcnt(0)"); A.raw(f"    v_writelane_b32 v0, s{18 + 2 * (k & 1)}, {k+1}")
            return
        A(f"{self.opt.clk} s[18:19]"); A("s_waitcnt lgkmcnt(0)")
        A(f"v_writelane_b32 v0, s18, {k+1}")
    def poll_items(self, load_text, dst, n, level, alt_reg=None):
        k = self.nslow; self.nslow += 1
        ld = Ins(load_text)
        chk = []; assert n == 1
        chk += [Ins(f"v_cmp_gt_u32 vcc, {level}, v{dst}"), Ins(f"s_cbranch_vccnz L_slow{k}") if not self.opt.nopoll else Ins("s_nop 0"), Raw(f"L_back{k}:")]
        sl = [f"L_slow{k}:", f"    s_mov_b32 s{sCNT}, 0x20000", f"L_slowl{k}:", "    " + load_text, "    s_waitcnt vmcnt(0)",
              f"    v_cmp_gt_u32 vcc, {level}, v{dst}", "    s_nop 4", f"    s_cbranch_vccz L_back{k}", f"    s_sleep {self.opt.slp}",
              f"    s_sub_u32 s{sCNT}, s{sCNT}, 1", f"    s_cmp_lg_u32 s{sCNT}, 0", f"    s_cbranch_scc1 L_slowl{k}", f"    s_branch L_back{k}"]
        self.slow += sl
        return ld, chk

    def tag_check(self, loads, regs, tmp):
        k = self.nslow; self.nslow += 1
        body = []; src = []
        for i, r in enumerate(regs):
            if r[0] == 'a': body.append(f"v_accvgpr_read_b32 v{tmp+i}, {r}"); src.append(f"v{tmp+i}")
            else: src.append(r)
        if len(src) == 4: body += [f"v_max3_u32 v{tmp}, {src[0]}, {src[1]}, {src[2]}", f"v_max_u32 v{tmp}, v{tmp}, {src[3]}"]
        else: body += [f"v_max_u32 v{tmp}, {src[0]}, {src[1]}"]
        body.append(f"v_cmp_eq_u32 vcc, -1, v{tmp}")
        def issued(): assert all(any(isinstance(x, Ins) and x.text == t for x in self.A.items) for t in loads), "check before its loads"
        chk = [Call(issued)] + [Ins(t) for t in body] + [Ins(f"s_cbranch_vccnz L_slow{k}") if not self.opt.nopoll else Ins("s_nop 0"), Raw(f"L_back{k}:")]
        self.slow += [f"L_slow{k}:", f"    s_mov_b32 s{sCNT}, 0x20000", f"L_slowl{k}:"] + ["    " + t for t in loads] + ["    s_waitcnt vmcnt(0)"] + ["    " + t for t in body]
        self.slow += ["    s_nop 4", f"    s_cbranch_vccz L_back{k}", f"    s_sleep {self.opt.slp}", f"    s_sub_u32 s{sCNT}, s{sCNT}, 1", f"    s_cmp_lg_u32 s{sCNT}, 0", f"    s_cbranch_scc1 L_slowl{k}", f"    s_branch L_back{k}"]
        return chk

    def entry(self):
        A = Asm()
        if self.opt.ts: A(f"{self.opt.clk} s[30:31]"); A("s_memrealtime s[98:99]") if self.opt.nbts else None
        A("s_cmp_ge_u32 s2, 256"); A("s_cbranch_scc1 L_exit")
        A("s_load_dwordx16 s[4:19], s[0:1], 0"); A("s_load_dwordx8 s[20:27], s[0:1], 64"); A("s_load_dwordx2 s[28:29], s[0:1], 96")
        A(f"v_and_b32 v{vL}, 63, v0"); A("v_lshrrev_b32 v2, 6, v0"); A(f"v_readfirstlane_b32 s{sW}, v2")
        A("s_cmp_ge_u32 s2, 224"); A("s_cbranch_scc1 L_helper")
        return A

    def main(self, A):
        o = self.opt
        L = f"v{vL}"
        self.tsnames = []; self.A = A
        sTH, sFH = sT2, sT3
        A(f"s_and_b32 s{sT0}, s2, 7"); A(f"s_lshr_b32 s{sT1}, s2, 3")
        A(f"s_and_b32 s{sI}, s{sT1}, 3"); A(f"s_lshr_b32 s{sJ}, s{sT1}, 2")
        A(f"s_lshr_b32 s{sRT}, s{sT0}, 1"); A(f"s_lshl2_add_u32 s{sRT}, s{sRT}, s{sI}")
        A(f"s_and_b32 s{sFT}, s{sT0}, 1"); A(f"s_mul_i32 s{sFT}, s{sFT}, 7"); A(f"s_add_u32 s{sFT}, s{sFT}, s{sJ}")
        def kappa(s):
            if o.rot == 7:
                if s == 0: r = [f"s_lshl1_add_u32 s{sRHO}, s{sI}, s{sJ}", f"s_sub_u32 s{sT1}, s{sRHO}, 7", f"s_cselect_b32 s{sRHO}, s{sRHO}, s{sT1}"]
                else: r = [f"s_add_u32 s{sRHO}, s{sRHO}, 1", f"s_cmp_eq_u32 s{sRHO}, 7", f"s_cselect_b32 s{sRHO}, 0, s{sRHO}"]
            elif s == 0: return [f"s_mov_b32 s{sXO}, 0", f"s_mov_b32 s{sWO}, 0"]
            elif o.rot in (2, 3):
                n_ = o.rot; g0 = 1 + n_ * ((s - 1) // n_)
                if s == 1:
                    r = [f"s_add_u32 s{sT1}, s{sI}, s{sJ}"] + ([f"s_and_b32 s{sRHO}, s{sT1}, 1"] if n_ == 2 else [f"s_mul_i32 s{sRHO}, s{sT1}, 11", f"s_lshr_b32 s{sRHO}, s{sRHO}, 5", f"s_mul_i32 s{sRHO}, s{sRHO}, 3", f"s_sub_u32 s{sRHO}, s{sT1}, s{sRHO}"])
                else: r = [f"s_add_u32 s{sRHO}, s{sRHO}, 1", f"s_cmp_eq_u32 s{sRHO}, {n_}", f"s_cselect_b32 s{sRHO}, 0, s{sRHO}"]
                return r + [f"s_add_u32 s{sT1}, s{sRHO}, {g0}", f"s_lshl_b32 s{sXO+s}, s{sT1}, 7", f"s_mul_i32 s{sWO+s}, s{sT1}, {64*3584}"]
            elif s == 1:
                if o.rot == 0: r = [f"s_mov_b32 s{sRHO}, 1"]
                else: r = [f"s_mul_i32 s{sRHO}, s{sI}, 3", f"s_add_u32 s{sRHO}, s{sRHO}, 1", f"s_lshr_b32 s{sRHO}, s{sRHO}, 1", f"s_add_u32 s{sRHO}, s{sRHO}, s{sJ}",
                           f"s_add_u32 s{sRHO}, s{sRHO}, 1", f"s_sub_u32 s{sT1}, s{sRHO}, 6", f"s_cmp_gt_u32 s{sRHO}, 6", f"s_cselect_b32 s{sRHO}, s{sT1}, s{sRHO}"]
            else: r = [f"s_add_u32 s{sRHO}, s{sRHO}, 1", f"s_cmp_eq_u32 s{sRHO}, 7", f"s_cselect_b32 s{sRHO}, 1, s{sRHO}"]
            return r + [f"s_lshl_b32 s{sXO+s}, s{sRHO}, 7", f"s_mul_i32 s{sWO+s}, s{sRHO}, {64*3584}"]
        for t in kappa(0): A(t)
        A(f"s_lshl_b32 s{sLW}, s{sW}, 12")
        A(f"v_lshrrev_b32 v44, 3, {L}"); A(f"v_and_b32 v45, 7, {L}"); A(f"v_lshrrev_b32 v46, 4, {L}")
        A(f"s_lshl2_add_u32 s{sT1}, s{sRT}, s{sW}"); A(f"s_mul_i32 s{sT1}, s{sT1}, {32*896}")
        A("v_mul_u32_u24 v47, 896, v44"); A(f"v_add_u32 v47, s{sT1}, v47")
        A("v_xor_b32 v48, v45, v46"); A(f"v_lshl_add_u32 v{vXD}, v48, 4, v47")
        A(f"v_add_u32 v{vXD+1}, 6144, v{vXD}"); A(f"v_xor_b32 v{vXD+1}, 64, v{vXD+1}")
        A(f"v_add_u32 v{vXD+2}, {2*6144}, v{vXD}"); A(f"v_add_u32 v{vXD+3}, {2*6144}, v{vXD+1}")
        A(f"s_and_b32 s{sTH}, s{sW}, 1"); A(f"s_mul_i32 s{sT1}, s{sTH}, {32*3584}"); A(f"s_lshl_b32 s{sT0}, s{sFT}, 8"); A(f"s_add_u32 s{sT1}, s{sT1}, s{sT0}")
        A("v_mul_u32_u24 v47, 3584, v44"); A(f"v_add_u32 v47, s{sT1}, v47")
        A(f"s_and_b32 s{sT0}, s{sW}, 2")
        A("v_and_b32 v48, 1, v46"); A(f"v_or_b32 v48, s{sT0}, v48"); A("v_lshlrev_b32 v48, 1, v48"); A("v_xor_b32 v48, v45, v48")
        A(f"v_lshl_add_u32 v{vWD_}, v48, 4, v47")
        for m in range(1, 4): A(f"v_add_u32 v{vWD_+m}, {m*27648}, v{vWD_}")
        A(f"s_mov_b32 s{rX+2}, {S*D*2}"); A(f"s_mov_b32 s{rX+3}, 0x20000"); A(f"s_mov_b32 s{rW+2}, {D*F*2}"); A(f"s_mov_b32 s{rW+3}, 0x20000")
        A(f"s_mov_b32 m0, s{sLW}"); A(f"s_cmp_ge_u32 s{sW}, 2")
        A(f"s_mov_b32 s{rX}, s{sX}"); A(f"s_mov_b32 s{rX+1}, s{sX+1}")
        A(f"s_cselect_b32 s{rW}, s{sWU}, s{sWG}"); A(f"s_cselect_b32 s{rW+1}, s{sWU+1}, s{sWG+1}")
        if o.ts: A("s_mov_b32 s3, s30"); A("v_writelane_b32 v0, s98, 63") if o.nbts else None
        def m0set(base): return Ins(f"s_add_u32 m0, s{sLW}, {base}") if base else Ins(f"s_mov_b32 m0, s{sLW}")
        def dma_x(s): return [m0set(2 * (s & 3) * SLOT)] + [Ins(f"buffer_load_dwordx4 v{vXD+m}, {srd(rX)}, s{sXO+s} offen offset:{m*1024} lds") for m in range(4)]
        def dma_w(slot, s): return [m0set(slot * SLOT)] + [Ins(f"buffer_load_dwordx4 v{vWD_+m}, {srd(rW)}, s{sWO+s} offen offset:{m*1024} lds") for m in range(4)]
        def dma_d(slot, s): return [m0set(slot * SLOT)] + [Ins(f"buffer_load_dwordx4 v{vDD+m}, {srd(rWD)}, s{sDO+s} offen offset:{m*1024} lds") for m in range(4)]
        stA = {}
        self.stamp(A, "S.karg")
        for it in dma_x(0)[1:] + dma_w(1, 0): A.add(it)
        stA[0] = A.items[-1]
        self.stamp(A, "S.iss0")
        if o.probe0: A.wait(vm=[stA[0]]); self.stamp(A, "S.land0")
        Q = Fill()
        if o.pf:
            A(f"s_getpc_b64 {sp(sM1)}"); A.raw("L_pc:")
            A(f"v_lshlrev_b32 v47, 7, {L}"); A(f"s_lshl_b32 s{sT0}, s{sW}, 13"); A(f"v_add_u32 v47, s{sT0}, v47"); A("v_min_u32 v47, L_exit-L_pc, v47"); A(f"global_load_dword v255, v47, {sp(sM1)}")
        for t in kappa(1): A(t)
        for s in range(2, 7): Q.add(*kappa(s))
        Q.add(f"s_lshr_b32 s{sFH}, s{sW}, 1")
        Q.add(f"v_and_b32 v47, 31, {L}", f"v_lshrrev_b32 v48, 5, {L}", f"v_bfe_u32 v49, {L}, 1, 3", "v_xor_b32 v49, v49, v48", "v_lshlrev_b32 v49, 4, v49", "v_lshl_add_u32 v49, v47, 7, v49")
        Q.add(f"s_lshl1_add_u32 s{sT0}, s{sTH}, s{sFH}", f"s_lshl_b32 s{sT0}, s{sT0}, 12", f"v_add_u32 v{vXR(0,0,0)}, s{sT0}, v49")
        for s in range(1, 4): Q.add(f"v_xor_b32 v{vXR(0,0,s)}, {32*s}, v{vXR(0,0,0)}")
        for s in range(4): Q.add(f"v_xor_b32 v{vXR(0,1,s)}, 4096, v{vXR(0,0,s)}")
        for b in range(2):
            for s in range(4): Q.add(f"v_or_b32 v{vXR(1,b,s)}, 0x10000, v{vXR(0,b,s)}")
        Q.add(f"v_bfe_u32 v50, {L}, 2, 2", "v_lshl_add_u32 v51, v48, 3, v50", "v_lshlrev_b32 v51, 7, v51", f"v_bfe_u32 v52, {L}, 4, 1", f"v_and_b32 v53, 1, {L}",
              f"v_bfe_u32 v54, {L}, 1, 1", f"v_bfe_u32 v55, {L}, 3, 1")
        Q.add("v_lshl_add_u32 v56, v54, 13, v51", "v_lshl_add_u32 v56, v53, 4, v56", "v_lshl_add_u32 v56, v52, 3, v56", "v_lshl_add_u32 v57, v54, 1, v55",
              f"v_xor_b32 v57, s{sW}, v57", f"v_lshl_add_u32 v{vWR(0,0)}, v57, 5, v56", f"v_xor_b32 v{vWR(0,1)}, 32, v{vWR(0,0)}",
              f"v_or_b32 v{vWR(1,0)}, 0x10000, v{vWR(0,0)}", f"v_or_b32 v{vWR(1,1)}, 0x10000, v{vWR(0,1)}")
        Q.add(f"v_and_b32 v57, 7, {L}", "v_lshlrev_b32 v58, 2, v52", "v_cmp_eq_u32 vcc, v57, v58", "v_mov_b32 v57, 0x3f803f80")
        for e in range(4): Q.add(f"v_cndmask_b32 v{vSEL+e}, 0, v57, vcc")
        Q.add(f"s_lshl_b32 s{sT0}, s2, 2", f"s_load_dword s{sDV}, {sp(sD)}, s{sT0}")
        rT = rOUT
        tch = [f"s_cmp_eq_u32 s{sW}, 0", f"s_cselect_b32 s{rT}, s{sWD}, s{sKF}", f"s_cselect_b32 s{rT+1}, s{sWD+1}, s{sKF+1}", f"s_cselect_b32 s{rT+2}, s{rW+2}, s{rX+2}",
               f"s_cmp_ge_u32 s{sW}, 2", f"s_cselect_b32 s{rT}, s{rW}, s{rT}", f"s_cselect_b32 s{rT+1}, s{rW+1}, s{rT+1}", f"s_cselect_b32 s{rT+2}, s{rW+2}, s{rT+2}",
               f"s_cselect_b32 s{sT0}, 8, 7", f"s_cselect_b32 s{sT1}, 128, 0", f"s_mov_b32 s{rT+3}, 0x20000",
               f"v_lshl_add_u32 v47, s2, 6, {L}", f"v_lshlrev_b32 v47, s{sT0}, v47", f"buffer_load_dword v255, v47, {srd(rT)}, s{sT1} offen"]
        V = VQ()
        stA[1] = V.add(dma_x(1) + dma_w(3, 1))
        while V.q: V.take(A); Q.take(A, 4 * o.pre_gap)
        Q.flush(A)
        if o.touch == 1: A.add(*tch)
        self.stamp(A, "S.q")
        stA[2] = V.add(dma_x(2) + dma_w(5, 2))
        for _ in range(o.pre2): V.take(A)
        stA[3] = V.add(dma_x(3) + dma_w(7, 3))
        A.wait(alllgkm=True)
        self.stamp(A, "setup")

        FQ = Fill(); VL = VQ()
        cvB, cD, vRW, vX2, vX1o, vX1p, vST, vPD, vPB = 15, 16, 20, 25, 26, 27, 28, 29, 5
        cvA = [14, 21, 22, 23]; vRZ, vKW, vFX = 208, 209, 210
        q = FQ
        if o.touch >= 2: q.add(Skip(4 * (o.touch - 2)), *tch)
        q.add(f"s_and_b32 s{sT0}, s2, 7", f"s_lshl2_add_u32 s{sR64}, s{sT0}, s{sI}", f"s_mov_b32 s{sDT}, s{sJ}")
        for r, p_, sz in ((rWD, sWD, D * F * 2), (rWS, sWS, WS_SIZE), (rKF, sKF, D * S * 2), (rOUT, sOUT, S * D * 2), (rDBG, sDBG, 256)):
            q.add(f"s_mov_b32 s{r}, s{p_}", f"s_mov_b32 s{r+1}, s{p_+1}", f"s_mov_b32 s{r+2}, {sz}", f"s_mov_b32 s{r+3}, 0x20000")
        srd_done = q.add("s_nop 0")
        vTB, vTD = 38, 39
        q.add(f"s_mul_i32 s{sT0}, s{sI}, 112", f"s_mul_i32 s{sT1}, s{sTH}, 56", f"s_add_u32 s{sT0}, s{sT0}, s{sT1}", f"v_add_u32 v56, s{sT0}, {L}", "v_mul_u32_u24 v56, 3584, v56",
              f"s_lshl_b32 s{sT1}, s{sFT}, 8", f"s_add_u32 s{sT1}, s{sT1}, 128", f"v_add_u32 v56, s{sT1}, v56", f"v_mov_b32 v57, {BIG}", f"v_cmp_gt_u32 vcc, 56, {L}",
              f"s_lshl2_add_u32 s{sT0}, s{sI}, s{sW}", f"s_mul_i32 s{sT0}, s{sT0}, 56", f"v_cndmask_b32 v{vTB}, v57, v56, vcc",
              f"v_add_u32 v56, s{sT0}, {L}", "v_and_b32 v59, 0xffffffc0, v56", "v_add_u32 v56, v56, v59", "v_mul_u32_u24 v56, 896, v56", f"s_lshl_b32 s{sT1}, s{sDT}, 7", f"v_add_u32 v56, s{sT1}, v56",
              f"v_cndmask_b32 v{vTD}, v57, v56, vcc", f"s_mov_b32 s{sT64}, {64*896}")
        tchB = lambda: Ins(f"buffer_load_dword a255, v{vTB}, {srd(rW)}, 0 offen")
        tchD = lambda: Ins(f"buffer_load_dword a254, v{vTD}, {srd(rWD)}, 0 offen")
        tchE = lambda: Ins(f"buffer_load_dword a253, v{vTD}, {srd(rWD)}, s{sT64} offen")
        tset = q.add("s_nop 0")
        q.add("v_lshl_add_u32 v56, v53, 5, v51", "v_lshl_add_u32 v56, v52, 4, v56", "v_lshl_add_u32 v56, v54, 3, v56", f"v_add_u32 v56, s{sLW}, v56",
              f"v_lshl_add_u32 v{vDR(0,0)}, v55, 6, v56", f"v_xor_b32 v{vDR(0,1)}, 64, v{vDR(0,0)}")
        for dh in range(2): q.add(f"v_or_b32 v{vDR(1,dh)}, 0x10000, v{vDR(0,dh)}")
        q.add("v_mul_u32_u24 v47, 896, v44", f"s_lshl_b32 s{sT0}, s{sDT}, 7", f"v_add_u32 v47, s{sT0}, v47", "v_xor_b32 v58, v45, v58", f"v_lshl_add_u32 v{vDD}, v58, 4, v47")
        for m in range(1, 4): q.add(f"v_add_u32 v{vDD+m}, {m*6144}, v{vDD}")
        q.add(f"s_mul_i32 s{sCNT}, s{sR64}, {2*112}", f"s_mul_i32 s{sRHO}, s{sW}, 14")
        if o.rot2: q.add(f"s_lshl1_add_u32 s{sYO}, s{sI}, s{sJ}", f"s_sub_u32 s{sT1}, s{sYO}, 7", f"s_cmp_ge_u32 s{sYO}, 7", f"s_cselect_b32 s{sYO}, s{sT1}, s{sYO}")
        for s in range(7):
            if o.rot2:
                if s: q.add(f"s_add_u32 s{sYO}, s{sYO}, 1", f"s_cmp_eq_u32 s{sYO}, 7", f"s_cselect_b32 s{sYO}, 0, s{sYO}")
                q.add(f"s_lshl1_add_u32 s{sT0}, s{sYO}, s{sRHO}")
            else: q.add(f"s_lshr_b32 s{sT0}, s{sXO+s}, 6", f"s_add_u32 s{sT0}, s{sT0}, s{sRHO}")
            q.add(f"s_add_u32 s{sHO+s}, s{sT0}, s{sCNT}", f"s_lshl_b32 s{sHO+s}, s{sHO+s}, 10",
                  f"s_and_b32 s{sT1}, s{sT0}, 0xfc", f"s_add_u32 s{sT0}, s{sT0}, s{sT1}", f"s_mul_i32 s{sDO+s}, s{sT0}, {16*896}")
        q.add(f"v_lshlrev_b32 v{vH[0]}, 4, {L}", f"v_add_u32 v{vH[1]}, {112*1024}, v{vH[0]}", f"v_add_u32 v{vH[2]}, {56*1024}, v{vH[0]}", f"v_add_u32 v{vH[3]}, {168*1024}, v{vH[0]}")
        q.add(f"s_lshl1_add_u32 s{sT0}, s{sTH}, s{sFH}", f"s_lshl2_add_u32 s{sT0}, s{sRT}, s{sT0}", f"s_xor_b32 s{sT1}, s{sT0}, 1",
              f"s_mul_i32 s{sT0}, s{sT0}, 112", f"s_mul_i32 s{sT1}, s{sT1}, 112", f"s_lshl2_add_u32 s{sCNT}, s{sFT}, s{sW}",
              f"s_add_u32 s{sHS[0]}, s{sT0}, s{sCNT}", f"s_add_u32 s{sHS[1]}, s{sT1}, s{sCNT}", f"s_xor_b32 s{sCNT}, s{sCNT}, 1",
              f"s_add_u32 s{sHS[2]}, s{sT0}, s{sCNT}", f"s_add_u32 s{sHS[3]}, s{sT1}, s{sCNT}")
        for k in range(4): q.add(f"s_lshl_b32 s{sHS[k]}, s{sHS[k]}, 10")
        q.add(f"s_mov_b32 s{sM1}, 0xaaaaaaaa", f"s_mov_b32 s{sM1+1}, 0xaaaaaaaa", f"s_mov_b32 s{sM2}, 0xcccccccc", f"s_mov_b32 s{sM2+1}, 0xcccccccc", f"s_mov_b32 s{sMH}, 0", f"s_mov_b32 s{sMH+1}, -1")
        q.add(f"s_lshl1_add_u32 s{sT0}, s{sRT}, s{sTH}", f"s_lshl_b32 s{sT0}, s{sT0}, 5", f"s_lshl1_add_u32 s{sT1}, s{sFT}, s{sFH}", f"s_add_u32 s{sT0}, s{sT0}, s{sT1}",
              f"s_lshl2_add_u32 s{sT0}, s{sT0}, {WS_FL}", f"v_mov_b32 v{vFLG}, {BIG}", f"v_writelane_b32 v{vFLG}, s{sT0}, 0",
              f"v_lshlrev_b32 v{vPD}, 2, {L}", f"v_cndmask_b32 v{vPD}, 0, v{vPD}, {sp(sMH)}",
              f"s_cmp_eq_u32 s{sW}, 0", f"s_cselect_b32 s{sLV1}, 1, 0", f"s_cselect_b32 s{sLV2}, 2, 0", f"s_cselect_b32 s{sT0}, 0, {BIG}", f"v_add_u32 v{vPD}, s{sT0}, v{vPD}",
              f"s_lshl1_add_u32 s{sT0}, s{sTH}, s{sFH}", f"s_lshl2_add_u32 s{sT0}, s{sRT}, s{sT0}", f"s_lshl_b32 s{sT0}, s{sT0}, 8", f"s_add_u32 s{sT0}, s{sT0}, {WS_ST}",
              f"s_cmp_eq_u32 s{sFT}, 0", f"s_cselect_b32 s{sT0}, s{sT0}, {BIG}", f"v_lshl_add_u32 v{vST}, {L}, 3, s{sT0}", f"v_mov_b32 v47, {BIG}",
              f"v_cndmask_b32 v{vST}, v{vST}, v47, {sp(sMH)}",
              f"s_lshl2_add_u32 s{sYO}, s2, s{sW}", f"s_lshl_b32 s{sYO}, s{sYO}, 11", f"s_add_u32 s{sYO}, s{sYO}, {WS_YT}")
        kA, kN, kO = [192, 196], [200, 201], 204
        kf = [Ins(t) for t in [f"s_lshl2_add_u32 s{sRHO}, s2, s{sW}", f"s_lshl_b32 s{sRHO}, s{sRHO}, 11"] +
              [t for u in range(2) for t in (f"buffer_load_dwordx4 {v(kA[u],4)}, v{vH[0]}, {srd(rKF)}, s{sRHO} offen offset:{u*1024}",
                                             f"buffer_load_dword v{kN[u]}, v{vH[0]}, {srd(rKF)}, s{sRHO} offen offset:{u*1024+16}")]]
        q.add(Call(lambda: VL.add(kf)))
        q.add(f"v_and_b32 v47, 15, {L}", "v_add_u32 v56, 1, v47", "v_and_b32 v57, 1, v56", f"v_mul_u32_u24 v57, {KCP}, v57", "v_and_b32 v56, 30, v56",
              "v_lshl_add_u32 v56, v46, 3, v56", f"v_lshl_add_u32 v{cvA[0]}, v56, 1, v57",
              f"s_mul_i32 s{sT0}, s{sFH}, {KCH}", f"s_add_u32 s{sT0}, s{sT0}, {CB}", f"s_lshl_b32 s{sT1}, s{sTH}, 8", f"s_add_u32 s{sCNT}, s{sT0}, s{sT1}", f"v_add_u32 v{cvA[0]}, s{sCNT}, v{cvA[0]}")
        for k in range(1, 4): q.add(f"v_add_u32 v{cvA[k]}, {1024*k}, v{cvA[0]}")
        q.add(f"v_bfe_u32 v56, {L}, 3, 1", f"v_mul_u32_u24 v56, {KCP}, v56", "v_lshl_add_u32 v56, v45, 2, v56", f"v_add_u32 v56, s{sT0}, v56",
              f"s_cmp_eq_u32 s{sTH}, 0", f"s_cselect_b32 s{sCNT}, 16, 0", f"v_mov_b32 v57, {XS2}", f"v_cmp_gt_u32 vcc, s{sCNT}, {L}", "s_nop 1", f"v_cndmask_b32 v{vFX}, v57, v56, vcc",
              f"s_lshl3_add_u32 s{sT0}, s{sT1}, s{sT0}", f"s_add_u32 s{sT0}, s{sT0}, 32", f"v_add_u32 v{vKW}, s{sT0}, v{vH[0]}")
        q.add(f"s_mul_i32 s{sT0}, s{sFH}, {RCH}", f"s_add_u32 s{sT0}, s{sT0}, {RB}", f"v_lshl_add_u32 v{vRZ}, {L}, 3, s{sT0}",
              f"s_lshl3_add_u32 s{sCNT}, s{sT1}, s{sT0}", f"v_add_u32 v{vRW}, s{sCNT}, v{vH[0]}",
              f"s_add_u32 s{sT0}, s{sT0}, s{sT1}", f"s_add_u32 s{sT0}, s{sT0}, 480", "v_lshlrev_b32 v56, 4, v46", "v_lshlrev_b32 v57, 5, v47", "v_sub_u32 v56, v56, v57", f"v_add_u32 v{cvB}, s{sT0}, v56")
        q.add(f"s_lshl_b32 s{sT0}, s{sFH}, 4", f"s_lshr_b32 s{sDV}, s{sDV}, s{sT0}", f"s_and_b32 s{sDV}, s{sDV}, 0xffff", f"s_cmp_eq_u32 s{sTH}, 0", f"s_cselect_b32 s{sDV}, s{sDV}, 0",
              "v_lshl_add_u32 v56, v46, 3, v47", "v_sub_u32 v56, 15, v56", "v_and_b32 v57, 1, v56", "v_lshlrev_b32 v57, 4, v57", f"v_lshlrev_b32 v57, v57, s{sDV}", "v_ashrrev_i32 v56, 1, v56")
        for e in range(4): q.add(f"v_cmp_eq_u32 vcc, {e}, v56", "s_nop 1", f"v_cndmask_b32 v{cD+e}, 0, v57, vcc")
        if o.ts:
            for k in range(8): q.add(f"s_mov_b32 s{22+k}, 0")
        q.add(f"v_lshlrev_b32 v47, 3, {L}", f"s_lshl_b32 s{sT0}, s{sW}, 9", f"v_add_u32 v47, s{sT0}, v47", f"v_add_u32 v{vX1o}, {XS1}, v47", f"v_add_u32 v{vX2}, {XS2}, v47")
        for r in (vAC[0], vAC[1], vBC[0], vBC[1]): q.add(f"v_mov_b32 v{r+2}, 0", f"v_mov_b32 v{r+3}, 0")

        KQ = Fill()
        KQ.add(Wait(vm=[kf[-1]]))
        for u in range(2):
            a0 = kA[u]
            KQ.add(f"ds_write_b128 v{vKW}, {v(a0,4)} offset:{u*1024}")
            for e, (hi, lo) in enumerate([(a0+1, a0), (a0+2, a0+1), (a0+3, a0+2), (kN[u], a0+3)]): KQ.add(f"v_alignbit_b32 v{kO+e}, v{hi}, v{lo}, 16")
            KQ.add(Skip(2), f"ds_write_b128 v{vKW}, {v(kO,4)} offset:{u*1024+KCP}", Skip(2))
        KQ.add(f"v_readfirstlane_b32 s{sT0}, v{kA[0]}", f"v_mov_b32 v{kO}, 0", f"v_mov_b32 v{kO+1}, 0", f"s_lshl_b32 s{sT0}, s{sT0}, 16", f"ds_write_b64 v{vRZ}, {v(kO,2)} offset:4096",
               f"v_mov_b32 v{kO+2}, 0", f"v_writelane_b32 v{kO+2}, s{sT0}, 15", f"ds_write_b32 v{vFX}, v{kO+2}")
        def xread(s, st, b):
            base = 2 * (s & 3) * SLOT
            return Ins(f"ds_read_b128 {a_(aXF(s,st,b),4)}, v{vXR(base>>16,b,st)} offset:{base & 0xffff}")
        def wread(slot, st, al, buf):
            base = slot * SLOT + st * 2048
            return [Ins(f"ds_read_b64_tr_b16 {v(vWF(buf,al)+2*e,2)}, v{vWR(base>>16,al)} offset:{(base & 0xffff) + e*512}") for e in range(2)]
        A.wait(vm=[stA[0]]); A("s_barrier")
        self.stamp(A, "a0")
        for it in [xread(0, 0, 0)] + wread(1, 0, 0, 0) + [xread(0, 0, 1)] + wread(1, 0, 1, 0): A.add(it)
        cur = []
        stB = {}; stD = {}; stE = {}
        def emit_group(g):
            c_ = 0
            for i, it in enumerate(g):
                if isinstance(it, Ins) and it.is_dma and i and ('s', 'm0') in g[i - 1].wr: c_ += 4 - self.FQ.take(A, 4)
                A.add(it); c_ += cost(it)
            return c_
        def vtake(hi_only=False):
            cont = VL.q and len(VL.q[0]) == 1 and isinstance(VL.q[0][0], Ins) and VL.q[0][0].is_dma
            if V.q and not V.q[0] and not cont: V.q.pop(0); return 0
            if V.q and V.q[0] and not (cont and any(isinstance(x, Ins) and (x.is_dma or ('s', 'm0') in x.wr) for x in V.q[0])): return emit_group(V.q.pop(0))
            if cont and V.q: return emit_group(VL.q.pop(0))
            if VL.q and not hi_only: return emit_group(VL.q.pop(0))
            return 0
        self.FQ = FQ
        kstep = 0
        for c in range(7):
            for st in range(4):
                buf = kstep & 1; nb = buf ^ 1
                first = (kstep == 0)
                def M(al, b):
                    acc = v(vACC(0, al, b), 16)
                    return f"{MF32} {acc}, {v(vWF(buf,al),4)}, {a_(aXF(c,st,b),4)}, {'0' if first else acc}"
                if st < 3: nx = [xread(c, st + 1, 0), xread(c, st + 1, 1)]; sl, ns = 2 * (c & 3) + 1, st + 1
                elif c < 6: nx = [xread(c + 1, 0, 0), xread(c + 1, 0, 1)]; sl, ns = 2 * ((c + 1) & 3) + 1, 0
                else: nx = []; sl, ns = BSLOT[0], 0
                nw0 = wread(sl, ns, 0, nb); nw1 = wread(sl, ns, 1, nb)
                if st == 0 and c > 0: self.stamp(A, f"A.{c}")
                elif st or c: self.stamp(A, f"a.{c}{st}")
                A.wait(lgkm=cur); cur = nx + nw0 + nw1
                A(M(0, 0))
                if st == 3:
                    A.wait(vm=[stA[c + 1] if c < 6 else stB[0]]); A("s_barrier")
                    if c < 3:
                        stA[c + 4] = V.add(dma_x(c + 4) + dma_w(2 * (c & 3) + 1, c + 4))
                        if c == 2 and o.tb:
                            assert tset not in FQ.q; V.add([tchB()]); V.pause(o.tb - 1)
                    else:
                        if c == 4: FQ.flush(A); VL.flush(A)
                        if c == 5: FQ.q += KQ.q
                        if c == 6: FQ.flush(A)
                        for kind, n_ in ([('B', 0), ('B', 1)], [('B', 2), ('D', 0)], [('D', 1), ('D', 2)], [('D', 3), ('D', 4)])[c - 3]:
                            if (kind, n_) == ('D', 0) and o.td: V.add([tchD()]); V.pause(o.td - 1)
                            if kind == 'B': stB[n_] = V.add([f"s_add_u32 s{sWO+n_}, s{sWO+n_}, 128"] + dma_w(BSLOT[n_], n_))
                            else: stD[n_] = V.add(dma_d(DSA[n_], n_))
                for it in nx[:1] + nw0: A.add(it)
                FQ.take(A, 24 - 4 * (len(nx[:1]) + 2) - vtake(True))
                A(M(0, 1))
                for it in nx[1:] + nw1: A.add(it)
                FQ.take(A, 24 - 4 * (len(nx[1:]) + 2))
                A(M(1, 0)); FQ.take(A, 24 - vtake(True))
                A(M(1, 1)); FQ.take(A, 24)
                x0 = aXF(c, st, 0); w0 = vWF(buf, 0)
                A(f"{MF4} {v(vSQ,4)}, {a_(x0,2)}, {a_(x0,2)}, {'0' if first else v(vSQ,4)}")
                A(f"{MF4} {v(vSQ2,4)}, {a_(x0+2,2)}, {a_(x0+2,2)}, {'0' if first else v(vSQ2,4)}")
                A(f"{MF16} {v(vSUM,4)}, {v(vSEL,4)}, {a_(x0,4)}, {'0' if first else v(vSUM,4)}")
                if len(V.q) > o.v3 or VL.q: vtake()
                A(f"{MF16} {v(vSA,4)}, {v(vSEL,4)}, {v(w0,4)}, {'0' if first else v(vSA,4)}")
                kstep += 1
        self.stamp(A, "aend")

        VL.flush(A)
        def row_consts(q, b, d):
            q.add(f"v_rcp_f32 v{vTMP}, v{d}", f"v_mul_f32 v{vIR+b}, v{d}, v{d}", f"v_mul_f32 v{vA0+b}, {fl(C0)}, v{vTMP}",
                  f"v_mul_f32 v{vA1+b}, v{vTMP}, v{vTMP}", f"v_mul_f32 v{vA1+b}, v{vA1+b}, v{vTMP}", f"v_mul_f32 v{vA1+b}, {fl(C1)}, v{vA1+b}")
        def split3(q, src, dst, t):
            q.add(f"v_cndmask_b32 v{src}, v{src}, 0, {sp(sMH)}",
                  f"v_cvt_pk_bf16_f32 v{t}, v{src}, v{src}", f"v_and_b32 v{t+1}, 0xffff0000, v{t}", f"v_sub_f32 v{src}, v{src}, v{t+1}",
                  f"v_cvt_pk_bf16_f32 v{t+2}, v{src}, v{src}", f"v_and_b32 v{t+1}, 0xffff0000, v{t+2}", f"v_sub_f32 v{src}, v{src}, v{t+1}",
                  f"v_and_b32 v{t}, 0xffff, v{t}", f"v_or_b32 v{dst}, v{t}, v{t+1}", f"v_cvt_pk_bf16_f32 v{dst+1}, v{src}, 0")
        q = FQ; T = 68
        q.add(Skip(1))
        for e in range(4): q.add(f"v_add_f32 v{vSQ+e}, v{vSQ+e}, v{vSQ2+e}")
        q.add(f"v_cndmask_b32 v{T}, v{vSQ}, v{vSQ+1}, {sp(sM1)}", f"v_cndmask_b32 v{T+1}, v{vSQ+2}, v{vSQ+3}, {sp(sM1)}", f"v_cndmask_b32 v{T}, v{T}, v{T+1}, {sp(sM2)}",
              f"v_mul_f32 v{T+2}, {fl(-1.0/D)}, v{vSUM}", f"v_mov_b32 v{T+1}, v{T}", f"v_cvt_pk_bf16_f32 v{vBC[0]}, v{T+2}, v{T+2}", f"v_mul_f32 v{T+2}, v{T+2}, v{T+2}",
              f"v_permlane32_swap_b32 v{T}, v{T+1}", f"v_add_f32 v{T}, v{T}, v{T+1}", f"v_mov_b32 v{vBC[0]+1}, v{vBC[0]}", f"v_mov_b32 v84, v{vBC[0]}",
              f"v_mul_f32 v{T}, {fl(1.0/D)}, v{T}", f"v_sub_f32 v{T}, v{T}, v{T+2}", f"v_max_f32 v{T}, 0, v{T}",
              f"v_cvt_pk_bf16_f32 v{T}, v{T}, v{T}", f"v_and_b32 v{T}, 0xffff0000, v{T}", f"v_add_f32 v{T}, {fl(1e-5)}, v{T}", f"v_cvt_pk_bf16_f32 v{T}, v{T}, v{T}",
              f"v_and_b32 v{T}, 0xffff0000, v{T}", f"v_sqrt_f32 v{T}, v{T}")
        split3(q, vSA, vAC[0], T + 4)
        q.add(f"v_cvt_pk_bf16_f32 v{T}, v{T}, v{T}", f"v_and_b32 v85, 0xffff0000, v{T}",
              f"ds_write_b64 v{vX1o}, v[84:85]")
        xw1 = q.add(f"ds_write_b64 v{vX1o}, {v(vAC[0],2)} offset:2048")
        row_consts(q, 0, 85)
        q.add(f"v_and_b32 v{86 if o.burst else T}, 0xffff0000, v84", f"v_mov_b32 v{87 if o.burst else T+1}, v{vTMP}")
        st_stats = Ins(f"buffer_store_dwordx2 {v(86 if o.burst else T,2)}, v{vST}, {srd(rWS)}, 0 offen sc1")
        if not o.burst: q.add(st_stats)
        q.add(f"v_min_u32 v{vPB}, 27, {L}", f"s_lshl_b32 s{sT0}, s{sR64}, 7", f"s_add_u32 s{sT0}, s{sT0}, {WS_FL}", f"v_lshl_add_u32 v{vPB}, v{vPB}, 2, s{sT0}")
        q.add(f"v_xor_b32 v{vX1p}, 1024, v{vX1o}", f"v_xor_b32 v{vX1o}, 512, v{vX1o}")
        ld_arr, chk_arr = self.poll_items(f"buffer_load_dword v6, v{vPD}, {srd(rDBG)}, 0 offen sc1", 6, 1, f"s{sLV1}")

        def geglu(q, g, al, b, ob, pk=False):
            acc = vACC(g, al, b); out = acc if o.burst else vO[ob]
            def bc(r): return (v(r & ~1, 2), r & 1)
            for hf in range(2):
                G = acc + 8 * hf; U = G + 4
                if not pk:
                    for e in range(4): q.add(f"v_mul_f32 v{vT+e}, v{G+e}, v{G+e}")
                    for e in range(4): q.add(f"v_fma_f32 v{vT+e}, v{vT+e}, v{vA1+b}, v{vA0+b}")
                    for e in range(4): q.add(f"v_mul_f32 v{vT+e}, v{G+e}, v{vT+e}")
                    for e in range(4): q.add(f"v_exp_f32 v{vT+e}, v{vT+e}", f"v_mul_f32 v{vN+e}, v{G+e}, v{U+e}")
                    for e in range(4): q.add(f"v_fma_f32 v{vT+e}, v{vT+e}, v{vIR+b}, v{vIR+b}")
                    for e in range(4): q.add(f"v_rcp_f32 v{vT+e}, v{vT+e}")
                    for e in range(4): q.add(f"v_mul_f32 v{vN+e}, v{vN+e}, v{vT+e}")
                else:
                    if hf == 1: continue
                    sel3 = f"op_sel:[0,{b},{b}] op_sel_hi:[1,{b},{b}]"
                    pT, pN = 96, 104
                    E = [(pT + 4 * h_ + e, pN + 4 * h_ + e, acc + 8 * h_ + e) for h_ in range(2) for e in (0, 2)]
                    for t_, n_, g_ in E: q.add(f"v_pk_mul_f32 {v(t_,2)}, {v(g_,2)}, {v(g_,2)}")
                    for t_, n_, g_ in E: q.add(f"v_pk_fma_f32 {v(t_,2)}, {v(t_,2)}, {v(vA1,2)}, {v(vA0,2)} {sel3}")
                    for t_, n_, g_ in E: q.add(f"v_pk_mul_f32 {v(t_,2)}, {v(g_,2)}, {v(t_,2)}")
                    for t_, n_, g_ in E: q.add(f"v_pk_mul_f32 {v(n_,2)}, {v(g_,2)}, {v(g_+4,2)}")
                    for e in range(8): q.add(f"v_exp_f32 v{pT+e}, v{pT+e}")
                    for t_, n_, g_ in E: q.add(f"v_pk_fma_f32 {v(t_,2)}, {v(t_,2)}, {v(vIR,2)}, {v(vIR,2)} {sel3}")
                    for e in range(8): q.add(f"v_rcp_f32 v{pT+e}, v{pT+e}")
                    for t_, n_, g_ in E: q.add(f"v_pk_mul_f32 {v(n_,2)}, {v(n_,2)}, {v(t_,2)}")
                    for e in range(4): q.add(f"v_cvt_pk_bf16_f32 v{out+e}, v{pN+2*e}, v{pN+2*e+1}")
                    continue
                for e in range(2): q.add(f"v_cvt_pk_bf16_f32 v{out+2*hf+e}, v{vN+2*e}, v{vN+2*e+1}")
            st_ = Ins(f"buffer_store_dwordx4 {v(out,4)}, v{vH[2*g]}, {srd(rWS)}, s{sHS[2*al+b]} offen sc1")
            if not o.burst: q.add(st_)
            return st_
        def corr(g, al, b):
            acc = v(vACC(g, al, b), 16)
            return f"{MF32} {acc}, {v(vAC[al],4)}, {v(vBC[b],4)}, {acc}"
        def dread(slot, sg, dh, dst):
            base = slot * SLOT + sg * 2048
            f = a_ if dst[0] == 'a' else v
            return [Ins(f"ds_read_b64_tr_b16 {f(dst[1]+2*e,2)}, v{vDR(base>>16,dh)} offset:{(base & 0xffff) + e*512}") for e in range(2)]
        mvrd = {}
        def d_move(s):
            mvrd[s] = [it for sg in range(2) for dh in range(2) for it in dread(DSA[s], sg, dh, ('a', aWD(s, sg, dh)))]
            return [Wait(vm=[stD[s]])] + mvrd[s]
        def e_issue(vq, s, after_move):
            if s == 0 and o.te and o.tepos < 0: V.add([tchE()]); V.pause(o.te - 1)
            stE[s] = vq.add(([Wait(lgkm=mvrd[after_move])] if after_move is not None else []) + [f"s_add_u32 s{sDO+s}, s{sDO+s}, {64*896}"] + dma_d(DSB[s], s))
        hstores = []
        MV = Fill(); PQ = Fill()
        BARS = {0: [1, 2], 2: [3, 4], 4: [5], 5: [6]} if o.bar5 else {0: [1, 2], 2: [3, 4], 4: [5, 6]}
        def b_issue(n_, after=None): stB[n_] = V.add(([Wait(lgkm=mvrd[after])] if after is not None else []) + [f"s_add_u32 s{sWO+n_}, s{sWO+n_}, 128"] + dma_w(BSLOT[n_], n_))
        def d_issue(n_, after): stD[n_] = V.add([Wait(lgkm=mvrd[after])] + dma_d(DSA[n_], n_))
        def after_move(s):
            if s == 0: b_issue(4, 0)
            elif s in (1, 2): d_issue(s + 4, s)
            elif s - 3 < o.elate: e_issue(VL, s - 3, s)
        MOVES = {1: [0, 1], 2: [2, 3], 3: [4], 4: [5, 6]}
        rld = [Ins(f"buffer_load_dwordx4 {a_(224+4*u,4)}, v{vH[0]}, {srd(rWS)}, s{sRHO} offen offset:{u*1024} sc1") for u in range(2)]
        def sig1():
            assert not any(it in FQ.q for it in hstores) and o.arrchk <= o.sig1
            return [Wait(vm=hstores + [st_stats]), f"v_mov_b32 v{vTMP}, 1", f"buffer_store_dword v{vTMP}, v{vFLG}, {srd(rWS)}, 0 offen sc1"]
        def arrived(): return [f"s_sub_u32 s{sRHO}, s{sYO}, {WS_YT-WS_KVR}"] + rld
        for c in range(7):
            for st in range(4):
                buf = kstep & 1; nb = buf ^ 1
                first = (c == 0 and st == 0); last = (c == 6 and st == 3); self.kb = c * 4 + st
                def M(al, b):
                    acc = v(vACC(1, al, b), 16)
                    return f"{MF32} {acc}, {v(vWF(buf,al),4)}, {a_(aXF(c,st,b),4)}, {'0' if first else acc}"
                if st < 3: nw = wread(BSLOT[c], st + 1, 0, nb) + wread(BSLOT[c], st + 1, 1, nb)
                elif c < 6: nw = wread(BSLOT[c + 1], 0, 0, nb) + wread(BSLOT[c + 1], 0, 1, nb)
                else: nw = []
                smf = f"{MF16} {v(vSB0,4)}, {v(vSEL,4)}, {v(vWF(buf,0),4)}, {'0' if first else v(vSB0,4)}"
                if st == 0 and c > 0: self.stamp(A, f"B.{c}")
                elif st or c: self.stamp(A, f"b.{c}{st}")
                if st == (1 if c == 1 else 0) and c in MOVES:
                    for s in MOVES[c]: MV.add(*d_move(s)); MV.add(Call(lambda s=s: after_move(s)))
                if c * 4 + st == o.sig1: V.add(sig1())
                if c * 4 + st == o.tepos and o.te: V.add([tchE()]); V.pause(o.te - 1)
                if c == o.pollarr // 4 and st == o.pollarr % 4: V.add([ld_arr])
                bar = (st == 3 and c in BARS)
                if bar and c == 0: assert xw1 not in FQ.q
                A.wait(lgkm=cur + ([xw1] if bar and c == 0 else [])); cur = nw
                if last: A(smf)
                if c == 0 and st == 3:
                    FQ.flush(A); A(corr(0, 0, 0)); FQ.add(Skip(2)); hstores.append(geglu(FQ, 0, 0, 0, 0))
                if c == 1 and st == 1:
                    PQ.flush(A)
                    for al, b in ((0, 1), (1, 0), (1, 1)): A(corr(0, al, b)); FQ.take(A, MV.take(A, 8) - 8 + o.bud)
                    for al, b in ((0, 1), (1, 0), (1, 1)): hstores.append(geglu(FQ, 0, al, b, b))
                    if o.burst: FQ.add(Call(lambda: V.add([st_stats] + hstores)))
                    FQ.add(Call(lambda: sys.stderr.write(f"geglu A done at pass-B step {self.kb}\n")))
                A(M(0, 0))
                if bar:
                    A.wait(vm=[stB[b_] for b_ in BARS[c]])
                    if c * 4 + st == o.arrchk: A.wait(vm=[ld_arr]); A.add(*chk_arr)
                    A("s_barrier")
                    if c * 4 + st == o.arrchk: V.add(arrived())
                    if c == 0:
                        A(f"ds_read_b64 v[84:85], v{vX1p}"); A(f"ds_read_b64 {v(vAC[1],2)}, v{vX1o} offset:2048")
                        PQ.add(Skip(3), f"v_mov_b32 v{vBC[1]}, v84", f"v_mov_b32 v{vBC[1]+1}, v84"); row_consts(PQ, 1, 85)
                    if c == 0: b_issue(3)
                    if c == 2: b_issue(5); b_issue(6)
                    if c == 4:
                        for e_ in (4, 5):
                            if e_ < o.elate: e_issue(VL, e_, None)
                    if c == 5 and 6 < o.elate: e_issue(VL, 6, None)
                if last:
                    pre = Fill(); pre.add(Skip(1)); split3(pre, vSB0, vAC[0], vSQ); xw = pre.add(f"ds_write_b64 v{vX2}, {v(vAC[0],2)}"); pre.add(f"v_xor_b32 v{vX2}, 512, v{vX2}")
                    FQ.q = pre.q + FQ.q
                for it in nw: A.add(it)
                FQ.take(A, o.bud - 4 * len(nw))
                A(M(0, 1)); FQ.take(A, PQ.take(A, MV.take(A, 8) - 8 + o.bud - vtake()))
                A(M(1, 0)); FQ.take(A, MV.take(A, 12) - 12 + o.bud - (vtake() if len(V.q) + len(VL.q) > o.v3b else 0))
                A(M(1, 1)); FQ.take(A, PQ.take(A, o.bud - vtake()))
                if not last: A(smf); FQ.take(A, 8)
                kstep += 1
        self.stamp(A, "bend")
        while any(it is xw for it in FQ.q): FQ.take(A, 4)
        A.wait(lgkm=[xw]); A(corr(1, 0, 0))
        assert o.arrchk in (19, 23, 28)
        if o.arrchk == 28: A.wait(vm=[ld_arr]); A.add(*chk_arr)
        A("s_barrier"); A(f"ds_read_b64 {v(vAC[1],2)}, v{vX2}"); A(corr(1, 0, 1))
        MV.flush(A); FQ.flush(A)
        for e_ in range(7):
            if e_ not in stE: e_issue(VL, e_, e_ + 3 if e_ < 4 else None)
        HA = {}; HB = {}
        for s_ in range(7):
            HA[s_] = [(a_(aHA(s_,sg,tg),4), f"buffer_load_dwordx4 {a_(aHA(s_,sg,tg),4)}, v{vH[tg]}, {srd(rWS)}, s{sHO+s_} offen offset:{sg*1024} sc1") for sg in range(2) for tg in range(2)]
            HB[s_] = [(rHB(s_,sg,tg), f"buffer_load_dwordx4 {rHB(s_,sg,tg)}, v{vH[2+tg]}, {srd(rWS)}, s{sHO+s_} offen offset:{sg*1024} sc1") for sg in range(2) for tg in range(2)]
        ldB1, chkB1 = self.poll_items(f"buffer_load_dword v2, v{vPB}, {srd(rWS)}, 0 offen sc1", 2, 1, 1, 3)
        ldB2, chkB2 = self.poll_items(f"buffer_load_dword v4, v{vPB}, {srd(rWS)}, 0 offen sc1", 4, 1, 2, 3)
        hst = []
        cACC, cA, cB = 128, 160, 192
        X = Fill(); self.p3n = 0
        def run_geglu(al, b):
            n_ = 28 + 2 * al + b
            if n_ == o.arrchk: V.add(arrived())
            if n_ == o.sig1: V.add(sig1())
            if n_ == o.pollb1: V.add([ldB1, ld_a2])
            g = Fill(); hst.append(geglu(g, 1, al, b, b, pk=o.pk))
            while g.q:
                g.take(A, 28); X.take(A, 8); g.take(A, 28); self.p3n += 1
                (vtake(hi_only=(self.p3n % o.p3vl != 0)) or X.take(A, 8))
        ld_a2, chk_a2 = self.poll_items(f"buffer_load_dword v3, v{vPD}, {srd(rDBG)}, 0 offen sc1", 3, 1, f"s{sLV2}")
        vtake()
        self.stamp(A, "P.0")
        run_geglu(0, 0)
        self.stamp(A, "P.1")
        A(corr(1, 1, 0)); vtake(); A(corr(1, 1, 1))
        run_geglu(0, 1)
        self.stamp(A, "P.2")
        rwr = [f"ds_write_b128 v{vRW}, {a_(224+4*u,4)} offset:{u*1024}" for u in range(2)]
        early = o.arrchk < 28
        if early: X.add(*rwr)
        run_geglu(1, 0); X.flush(A); self.stamp(A, "P.4")
        def cra(a, jj): return [Ins(f"ds_read2_b32 {v(cA+4*a+2*e,2)}, v{cvA[a>>1]} offset0:{128*(a&1)+16*jj+2*e} offset1:{128*(a&1)+16*jj+2*e+1}") for e in range(2)]
        def crb(c, jj): return [Ins(f"ds_read_b128 {v(cB+4*c,4)}, v{cvB} offset:{512*(7-c)+64*jj}")]
        rb = {}; ra = {}
        def conv_first(q):
            for c in range(7, -1, -1): rb[c] = q.add(crb(c, 0)[0])
            for a in range(8):
                for it in cra(a, 0): ra[a] = q.add(it)
        def burst_b(n):
            if o.burst:
                for it in hst[:n]:
                    if not any(x is it for x in A.items): A.add(it)
        if early:
            burst_b(2)
            A.wait(alllgkm=True); A("s_barrier"); conv_first(X)
            run_geglu(1, 1); burst_b(4); X.flush(A); self.stamp(A, "P.5")
        else:
            run_geglu(1, 1); self.stamp(A, "P.5")
            V.flush(A); burst_b(4); [A(t) for t in rwr]
            A.wait(alllgkm=True); A("s_barrier"); conv_first(A)
        self.stamp(A, "conv0")
        FQ = Fill(); self.FQ = FQ
        eX, eST, eY, eP, eXF, eOF = 112, 120, 224, 140, 14, 30
        eR, eC, eA, eB = 124, 125, 234, 235
        EQ0 = Fill()
        EQ0.add(f"v_lshrrev_b32 v{eR}, 3, {L}", f"v_and_b32 v{eC}, 7, {L}",
               f"s_lshl3_add_u32 s{sT0}, s{sR64}, s{sW}", f"s_lshl_b32 s{sT0}, s{sT0}, 3", f"v_add_u32 v{eA}, s{sT0}, v{eR}",
               f"v_mul_u32_u24 v{eOF}, 896, v{eA}", f"s_lshl_b32 s{sT1}, s{sDT}, 7", f"v_lshl_add_u32 v{eOF}, v{eC}, 4, v{eOF}", f"v_add_u32 v{eOF}, s{sT1}, v{eOF}",
               f"v_add_u32 v{eOF+1}, {32*896}, v{eOF}", f"v_lshlrev_b32 v{eA}, 3, v{eA}", f"v_add_u32 v{eA}, {WS_ST}, v{eA}")
        xl = [Ins(f"buffer_load_dwordx2 {v(eST+2*tg,2)}, v{eA}, {srd(rWS)}, 0 offen offset:{tg*256} sc1") for tg in range(2)]
        xl += [Ins(f"buffer_load_dwordx4 {v(eX+4*tg,4)}, v{eOF+tg}, {srd(rX)}, 0 offen") for tg in range(2)]
        def q_xl():
            assert any(it is chkB1[1] for it in A.items), "stats loads before the level-1 check"
            V.add(xl)
        EQ0.add(Call(q_xl))
        assert o.xld > o.chkb1
        gap = 0
        for c in range(7, -1, -1):
            if c in (7, 3): A.wait(lgkm=[rb[c - 3]])
            A(f"{MF16} {v(cACC+4*c,4)}, {v(cD,4)}, {v(cB+4*c,4)}, 0")
        for jj in range(4):
            pos = 0
            self.stamp(A, f"C.{jj}")
            for a in range(8):
                for c in range(7 - a, -1, -1):
                    if jj == 0 and pos == 0: A.wait(lgkm=[ra[7]])
                    if jj > 0:
                        if pos == 0: A.wait(lgkm=[rb[3]])
                        if pos == 5: A.wait(lgkm=[rb[1]])
                        if pos == 7: A.wait(lgkm=[ra[7]])
                    gi = jj * 36 + pos
                    if pos and pos % 9 == 0: self.stamp(A, f"c.{gi}")
                    if gi + 32 == o.pollb1: V.add([ldB1, ld_a2])
                    if gi == o.xld: FQ.q += EQ0.q
                    if gi == o.chkb1: VL.add(list(chkB1) + [t for s_ in range(7) for _, t in HA[s_]])
                    if gi == o.sig2: V.add([Wait(vm=hst), f"v_mov_b32 v{vTMP}, 2", f"buffer_store_dword v{vTMP}, v{vFLG}, {srd(rWS)}, 0 offen sc1"])
                    if gi == o.pollb2: V.add([ldB2])
                    if gi == 130: FQ.add(Wait(vm=[ld_a2]), *chk_a2)
                    acc = v(cACC + 4 * (a + c), 4)
                    A(f"{MF16} {acc}, {v(cA+4*a,4)}, {v(cB+4*c,4)}, {acc}")
                    n = 0
                    if jj < 3:
                        if c == 7 - a: rb[c] = A.add(crb(c, jj + 1)[0]); n += 1
                        if c == 0:
                            for it in cra(a, jj + 1): ra[a] = A.add(it); n += 1
                    gap += 1
                    if gap >= (o.cgap if gi >= o.chkb1 else o.cgap0) and n == 0:
                        if vtake(): gap = 0
                        else: FQ.take(A, 8)
                    elif n == 0: FQ.take(A, 8)
                    pos += 1
        FQ.flush(A)
        self.stamp(A, "conv1")
        def fACC(tg, dh): return 160 + (tg * 2 + dh) * 16
        cS, cR = 224, 6
        FQ = Fill()
        FQ.add(f"s_add_u32 s{sT0}, s{sLW}, {CB}", f"v_add_u32 v{cR}, s{sT0}, v{vH[0]}", f"v_xor_b32 v{cR+1}, 4096, v{cR}", f"s_cmp_eq_u32 s{sTH}, 1", f"s_cselect_b64 {sp(sM1)}, -1, 0", "s_barrier")
        for r in range(16):
            FQ.add(f"v_cndmask_b32 v{cS+r}, v{cACC+16+r}, v{cACC+r}, {sp(sM1)}", f"v_cndmask_b32 v{cACC+r}, v{cACC+r}, v{cACC+16+r}, {sp(sM1)}")
            if r % 4 == 3: FQ.add(f"ds_write_b128 v{cR}, {v(cS+r-3,4)} offset:{(r//4)*1024}")
        FQ.add(f"v_and_b32 v{cR+2}, 15, {L}", f"v_lshrrev_b32 v{cR+3}, 4, {L}", f"v_lshlrev_b32 v{cR+3}, 3, v{cR+3}", f"v_lshl_add_u32 v{cR+2}, v{cR+2}, 5, v{cR+3}",
               Skip(2), Wait(alllgkm=True), "s_barrier")
        for k in range(4): FQ.add(f"ds_read_b128 {v(cS+4*k,4)}, v{cR+1} offset:{k*1024}")
        FQ.add(Skip(3))
        yst = []
        for k in range(4):
            for r in range(4): FQ.add(f"v_add_f32 v{cACC+4*k+r}, v{cACC+4*k+r}, v{cS+4*k+r}")
            FQ.add(f"v_cvt_pk_bf16_f32 v{cACC+16+2*k}, v{cACC+4*k}, v{cACC+4*k+1}", f"v_cvt_pk_bf16_f32 v{cACC+16+2*k+1}, v{cACC+4*k+2}, v{cACC+4*k+3}")
            FQ.add(f"v_min_u32 v{cACC+16+2*k}, -2, v{cACC+16+2*k}")
            yst.append(FQ.add(f"buffer_store_dwordx2 {v(cACC+16+2*k,2)}, v{cR+2}, {srd(rWS)}, s{sYO} offen offset:{k*512} sc1"))
        EQ = Fill()
        EQ.add(f"s_lshl2_add_u32 s{sRHO}, s{sDT}, s{sW}", f"s_lshl_b32 s{sRHO}, s{sRHO}, 16", f"s_lshl_b32 s{sT1}, s{sR64}, 7", f"s_add_u32 s{sRHO}, s{sRHO}, s{sT1}", f"s_add_u32 s{sRHO}, s{sRHO}, {WS_YT}",
               f"v_lshlrev_b32 v{eB}, 12, v{eR}", f"v_lshl_add_u32 v{eB}, v{eC}, 4, v{eB}", f"v_add_u32 v{eB+1}, 32768, v{eB}")
        yl = [f"buffer_load_dwordx4 {v(eY+4*u,4)}, v{eB+u}, {srd(rWS)}, s{sRHO} offen sc1" for u in range(2)]
        EQ.add(f"v_and_b32 v10, 31, {L}", f"v_lshrrev_b32 v11, 5, {L}", "v_lshlrev_b32 v11, 2, v11", f"v_xor_b32 v11, v11, v{eC}", "v_lshlrev_b32 v11, 4, v11", "v_lshl_add_u32 v11, v10, 8, v11",
               f"s_lshl_b32 s{sT0}, s{sW}, 13", f"v_add_u32 v10, s{sT0}, v11")
        for j in range(1, 4): EQ.add(f"v_xor_b32 v{10+j}, {16*j}, v10")
        EQ.add(f"s_lshl_b32 s{sT0}, s{sW}, 11", f"v_lshlrev_b32 v32, 1, v{eC}", f"v_xor_b32 v32, v32, v{eR}", "v_lshlrev_b32 v32, 4, v32", f"v_lshl_add_u32 v32, v{eR}, 8, v32",
               f"v_add_u32 v32, s{sT0}, v32", "v_xor_b32 v33, 16, v32")
        YB = CB + 16384
        YV = list(range(128, 140)) + list(range(156, 160))
        self.FQ = FQ
        pr = 44
        LOG2E = 1.4426950408889634
        def pwrite(tg): return [Ins(f"ds_write_b128 v{10+j}, {v(fACC(tg,dh)+4*j,4)} offset:{tg*32768+dh*128}") for dh in range(2) for j in range(4)]
        def pread(tg, b): return [Ins(f"ds_read_b128 {v(b+ww*8+4*j,4)}, v{32+j} offset:{tg*32768+ww*8192}") for ww in range(4) for j in range(2)]
        def finish(q, tg, b, pk):
            if pk:
                for e in range(0, 8, 2): q.add(f"v_pk_add_f32 {v(b+e,2)}, {v(b+e,2)}, {v(b+8+e,2)}")
                for e in range(0, 8, 2): q.add(f"v_pk_add_f32 {v(b+16+e,2)}, {v(b+16+e,2)}, {v(b+24+e,2)}")
                for e in range(0, 8, 2): q.add(f"v_pk_add_f32 {v(b+e,2)}, {v(b+e,2)}, {v(b+16+e,2)}")
            else:
                for e in range(8): q.add(f"v_add_f32 v{b+e}, v{b+e}, v{b+8+e}")
                for e in range(8): q.add(f"v_add_f32 v{b+16+e}, v{b+16+e}, v{b+24+e}")
                for e in range(8): q.add(f"v_add_f32 v{b+e}, v{b+e}, v{b+16+e}")
            for e in range(8): q.add(f"v_mul_f32 v{b+8+e}, {fl(-LOG2E)}, v{b+e}")
            for e in range(8): q.add(f"v_exp_f32 v{b+8+e}, v{b+8+e}")
            if pk:
                for e in range(0, 8, 2): q.add(f"v_pk_mul_f32 {v(b+e,2)}, {v(b+e,2)}, {v(eP+8*tg+e,2)}")
                for e in range(0, 8, 2): q.add(f"v_pk_add_f32 {v(b+8+e,2)}, {v(b+8+e,2)}, 1.0 op_sel_hi:[1,0]")
            else:
                for e in range(8): q.add(f"v_mul_f32 v{b+e}, v{b+e}, v{eP+8*tg+e}")
                for e in range(8): q.add(f"v_add_f32 v{b+8+e}, 1.0, v{b+8+e}")
            for e in range(8): q.add(f"v_rcp_f32 v{b+8+e}, v{b+8+e}")
            if pk:
                for e in range(0, 8, 2): q.add(f"v_pk_fma_f32 {v(b+e,2)}, {v(b+e,2)}, {v(b+8+e,2)}, {v(eXF+8*tg+e,2)}")
            else:
                for e in range(8): q.add(f"v_fma_f32 v{b+e}, v{b+e}, v{b+8+e}, v{eXF+8*tg+e}")
            for e in range(4): q.add(f"v_cvt_pk_bf16_f32 v{b+16+e}, v{b+2*e}, v{b+2*e+1}")
            q.add(f"buffer_store_dwordx4 {v(b+16,4)}, v{eOF+tg}, {srd(rOUT)}, 0 offen {o.outfl.replace('_', ' ')}".rstrip())
        ML = [(0, s, sg, tg, dh) for s in range(7) for sg in range(2) for (tg, dh) in ((0, 0), (1, 0), (0, 1), (1, 1))]
        ML += [(1, s, sg, 0, dh) for s in range(7) for sg in range(2) for dh in range(2)]
        ML += [(1, s, sg, 1, dh) for s in range(7 - o.tsplit) for sg in range(2) for dh in range(2)]
        ML += [(1, s, sg, 1, dh) for dh in range(2) for s in range(7 - o.tsplit, 7) for sg in range(2)]
        pw1 = pwrite(1); PW = Fill()
        hbl = [HB[s][sg * 2 + tg][1] for tg in range(2) for s in range(7) for sg in range(2)]
        MV = Fill(); emv = []
        def issued(t): return any(isinstance(x, Ins) and x.text == t for x in A.items)
        for m, (g, s, sg, tg, dh) in enumerate(ML):
            if m and m % 8 == 0: self.stamp(A, f"F.{m//4}")
            elif m % 4 == 0 and m: self.stamp(A, f"f.{m//4}")
            if m == 0:
                assert all(any(it is x for it in A.items) for x in xl); FQ.q += EQ.q
            if m % 8 == 0 and 8 <= m <= 56:
                e = m // 8 - 1
                r = [it for sg_ in range(2) for dh_ in range(2) for it in dread(DSB[e], sg_, dh_, ('a', aWD(e, sg_, dh_)))]
                MV.add(Wait(vm=[stE[e]]), *r); emv += r
            if m == 4 * (o.pollb2 - 144): V.add([ldB2])
            if m == 4 * o.chkb2: VL.add(list(chkB2) + hbl)
            if m == 4 * o.yld: V.add(yl)
            if m == 4 * o.xpre:
                FQ.add(Wait(vm=xl))
                for tg_ in range(2):
                    for e in range(4):
                        FQ.add(f"v_lshlrev_b32 v{eXF+8*tg_+2*e}, 16, v{eX+4*tg_+e}", f"v_and_b32 v{eXF+8*tg_+2*e+1}, 0xffff0000, v{eX+4*tg_+e}")
                    for e in range(8): FQ.add(f"v_add_f32 v{eP+8*tg_+e}, v{eXF+8*tg_+e}, v{eST+2*tg_}")
                    for e in range(8): FQ.add(f"v_mul_f32 v{eP+8*tg_+e}, v{eP+8*tg_+e}, v{eST+2*tg_+1}")
                FQ.add(f"s_lshl_b32 s{sT0}, s{sW}, 1", f"v_xor_b32 v{eA}, s{sT0}, v{eC}", f"v_lshlrev_b32 v{eA}, 4, v{eA}", f"v_lshl_add_u32 v{eA}, v{eR}, 7, v{eA}",
                       f"s_lshl_b32 s{sT0}, s{sW}, 11", f"s_add_u32 s{sT0}, s{sT0}, {YB}", f"v_add_u32 v{eA}, s{sT0}, v{eA}", f"v_xor_b32 v237, 16, v{eA}")
                FQ.add(f"v_xor_b32 v252, s{sW}, v{eC}", "v_lshlrev_b32 v252, 4, v252", f"v_lshl_add_u32 v252, v{eC}, 10, v252", f"v_lshl_add_u32 v252, v{eR}, 1, v252",
                       f"v_add_u32 v252, {YB}, v252", "v_xor_b32 v253, 64, v252")
                for e in range(16): FQ.add(f"v_mov_b32 v{YV[e]}, 0")
            if m == 84:
                FQ.flush(A); MV.flush(A); A.wait(lgkm=emv); A("s_barrier")
                pw = pwrite(0); FQ.add(Skip(2))
                for it in pw: FQ.add(it, Skip(1))
                V.flush(A)
                ywr = [Ins(f"ds_write_b128 v{eA}, {v(eY,4)}"), Ins(f"ds_write_b128 v237, {v(eY+4,4)} offset:1024")]
                FQ.add(*self.tag_check(yl, [f"v{eY}", f"v{eY+4}"], 238)); FQ.add(*ywr); FQ.add(Skip(2), Wait(lgkm=pw + ywr), "s_barrier")
                FQ.add(*pread(0, pr))
                for e in range(8): FQ.add(f"ds_read_u16_d16_hi v{YV[e]}, v252 offset:{e*128}")
                for e in range(8): FQ.add(f"ds_read_u16_d16_hi v{YV[8+e]}, v253 offset:{e*128}")
                for e in range(16): FQ.add(f"v_mul_f32 v{eP+e}, v{eP+e}, v{YV[e]}")
                finish(FQ, 0, pr, False)
            if o.tsplit and m == 112 - 2 * o.tsplit + 2:
                for it in pw1[:4]: PW.add(it, Skip(1))
                pw1 = pw1[4:]
            t_ = (HA if g == 0 else HB)[s][sg * 2 + tg]
            while not issued(t_[1]): assert vtake()
            acc = v(fACC(tg, dh), 16)
            if g == 1 and m < 84: assert not any(it in MV.q for it in emv[8 * s: 8 * s + 8])
            A(f"{MF32} {acc}, {a_(aWD(s, sg, dh), 4)}, {t_[0]}, {'0' if m < 4 else acc}")
            bud = o.bud
            if m & 1: bud -= vtake()
            else: bud = MV.take(A, 8) - 8 + bud
            FQ.take(A, PW.take(A, bud))
        self.stamp(A, "f2end")
        PW.flush(A); pw = Fill(); pw.add(*pw1)
        FQ.take(A, 40)
        while pw.q: pw.take(A, 4); FQ.take(A, 24)
        A.wait(alllgkm=True); A("s_barrier")
        for it in pread(1, pr + 32): A.add(it)
        FQ.flush(A)
        finish(A, 1, pr + 32, True)
        self.stamp(A, "end")
        if o.diagspin:
            A.raw("L_spin:"); A("s_memrealtime s[18:19]"); A("s_waitcnt lgkmcnt(0)"); A("s_sub_u32 s18, s18, s3"); A(f"s_cmp_lt_u32 s18, {o.diagspin}"); A("s_cbranch_scc1 L_spin")
        if o.ts:
            A("v_writelane_b32 v0, s3, 0")
            if self.nts < 50:
                for k in range(5): A(f"v_writelane_b32 v0, s{22+k}, {56+k}")
            A(f"v_lshlrev_b32 v2, 2, {L}"); A(f"s_lshl2_add_u32 s{sT0}, s2, s{sW}"); A(f"s_lshl_b32 s{sT0}, s{sT0}, 8"); A(f"s_add_u32 s{sT0}, s{sT0}, {WS_TS}")
            A(f"buffer_store_dword v0, v2, {srd(rWS)}, s{sT0} offen")
            if o.dbgts:
                A("v_add_u32 v2, 8, v2"); A(f"v_mov_b32 v3, {BIG}"); A(f"v_cmp_gt_u32 vcc, {self.nts+1}, {L}"); A("v_cndmask_b32 v2, v3, v2, vcc")
                A(f"buffer_atomic_umax v0, v2, {srd(rDBG)}, 0 offen sc1")
                A("s_not_b32 s3, s3"); A("v_mov_b32 v4, s3"); A("v_writelane_b32 v3, 4, 0"); A(f"buffer_atomic_umax v4, v3, {srd(rDBG)}, 0 offen sc1")
        A("s_endpgm")
        return A

    def helper(self):
        o = self.opt
        A = Asm(); L = f"v{vL}"
        A.raw("L_helper:")
        A("s_waitcnt lgkmcnt(0)")
        rK, rV, rSH = 32, 36, 40
        sHW = 60
        hn = [1]
        def hst(name):
            if not o.hts: return
            hn[0] += 1; A(f"{o.clk} s[64:65]"); A("s_waitcnt lgkmcnt(0)"); A(f"s_mov_b32 s{66+hn[0]}, s64")
        hst("karg")
        if o.hpf:
            A("s_getpc_b64 s[66:67]"); A.raw("L_hpc:")
            A(f"s_sub_u32 s66, s66, L_hpc-{NAME}_kernel"); A("s_subb_u32 s67, s67, 0")
            A("s_sub_u32 s68, s2, 224"); A("s_lshr_b32 s68, s68, 3"); A(f"s_lshl2_add_u32 s68, s68, s{sW}"); A("s_lshl_b32 s68, s68, 11")
            A(f"v_and_b32 v2, 15, {L}"); A("v_lshlrev_b32 v2, 7, v2"); A("v_add_u32 v2, s68, v2"); A(f"v_min_u32 v2, L_exit-{NAME}_kernel, v2")
            A("global_load_dword a0, v2, s[66:67]")
        self.mksrd(A, rK, sK, S * D * 2); self.mksrd(A, rV, sV, S * D * 2); self.mksrd(A, rSH, sSH, D * 8)
        self.mksrd(A, rWS, sWS, WS_SIZE); self.mksrd(A, rDBG, sDBG, 256)
        A(f"s_sub_u32 s{sHW}, s2, 224")
        A(f"s_or_b32 s{sT0}, s{sHW}, s{sW}"); A(f"s_cmp_eq_u32 s{sT0}, 0"); A(f"s_cselect_b32 s{sT3}, 0, {BIG}"); A(f"s_add_u32 s{sT0}, s{sT3}, {WS_FL}")
        A(f"v_lshl_add_u32 v2, {L}, 4, s{sT0}")
        for e in range(4): A(f"v_mov_b32 v{4+e}, 0")
        clr = [A(f"buffer_store_dwordx4 v[4:7], v2, {srd(rWS)}, 0 offen offset:{m*1024} sc1") for m in range(4)]
        A(f"s_lshl_b32 s{sT0}, s{sHW}, 6"); A(f"s_lshl_b32 s{sT1}, s{sW}, 4"); A(f"s_add_u32 s{sT0}, s{sT0}, s{sT1}"); A(f"s_mul_i32 s{sT0}, s{sT0}, 896")
        A(f"v_lshl_add_u32 v8, {L}, 4, s{sT0}")
        for g in range(1, 4): A(f"v_add_u32 v{8+g}, {g*3584}, v8")
        for r in range(3): A(f"v_subrev_u32 v{12+r}, {(3-r)*896}, v8")
        SHR, KR, VR, WW, KW, VT, AC = 16, 32, 108, 172, 204, 236, 240
        A(f"v_lshlrev_b32 v15, 4, v0"); A(f"s_lshl_b32 s{sT0}, s{sW}, 10"); A(f"s_add_u32 m0, s{sT0}, 65536")
        shd = A(f"buffer_load_dwordx4 v15, {srd(rSH)}, 0 offen lds")
        LQ = []
        for r in range(3): LQ.append(f"buffer_load_dwordx4 {v(KR+4*r,4)}, v{12+r}, {srd(rK)}, 0 offen")
        for t in range(16):
            LQ.append(f"buffer_load_dwordx4 {v(KR+4*(t+3),4)}, v{8+(t>>2)}, {srd(rK)}, 0 offen offset:{(t&3)*896}")
            LQ.append(f"buffer_load_dwordx4 {v(VR+4*t,4)}, v{8+(t>>2)}, {srd(rV)}, 0 offen offset:{(t&3)*896}")
        for _ in range(o.hpre): A(LQ.pop(0))
        if o.htouch:
            self.mksrd(A, 52, sWD, D * F * 2)
            A(f"s_lshl2_add_u32 s69, s{sHW}, s{sW}"); A("s_mul_i32 s69, s69, 12544"); A(f"v_min_u32 v3, 48, {L}"); A("v_lshlrev_b32 v3, 7, v3")
            tq = [f"buffer_load_dword a1, v3, s[52:55], s69 offen", "s_add_u32 s69, s69, 6272", f"buffer_load_dword a2, v3, s[52:55], s69 offen"]
            pos = min(len(LQ), o.htouch - 1); LQ[pos:pos] = [tq[0], tq[1], tq[2]]
        A(f"v_lshlrev_b32 v15, 6, {L}"); A("v_add_u32 v15, 65536, v15")
        A.wait(vm=[shd]); A("s_barrier")
        for m in range(4): A(f"ds_read_b128 {v(SHR+4*m,4)}, v15 offset:{16*m}")
        hst("issued")
        A(f"v_mov_b32 v2, {BIG}"); A(f"v_writelane_b32 v2, s{sT3}, 0"); A("v_mov_b32 v7, 2")
        A.wait(vm=clr); A(f"buffer_store_dword v7, v2, {srd(rDBG)}, 0 offen sc1")
        A("s_mov_b32 s61, 0xffff0000")
        A(f"s_sub_u32 s{sT0}, 3, s{sW}"); A(f"s_lshl_b32 s{sT0}, s{sT0}, 1"); A(f"v_and_b32 v4, 7, {L}"); A(f"v_xor_b32 v5, s{sT0}, v4")
        A("v_lshlrev_b32 v5, 4, v5"); A(f"v_lshl_add_u32 v5, {L}, 10, v5"); A("v_xor_b32 v6, 16, v5")
        for d in range(8):
            for pr_ in range(2):
                src = SHR + 2 * d + pr_
                A(f"v_lshlrev_b32 v{WW+8*(2*pr_)+d}, 16, v{src}"); A(f"v_and_b32 v{WW+8*(2*pr_+1)+d}, s61, v{src}")
        def unpk(r):
            for e in range(4):
                A(f"v_lshlrev_b32 v{KW+8*(r&3)+2*e}, 16, v{KR+4*r+e}"); A(f"v_and_b32 v{KW+8*(r&3)+2*e+1}, s61, v{KR+4*r+e}")
        for r in range(3): unpk(r)
        hst("first")
        O = SHR
        for t in range(16):
            unpk(t + 3)
            if LQ: A(LQ.pop(0))
            ac = AC + 8 * (t & 1)
            for i in range(4):
                for e in range(4):
                    kw = v(KW + 8 * ((t + 3 - i) & 3) + 2 * e, 2); ww = v(WW + 8 * i + 2 * e, 2)
                    if i == 0: A(f"v_pk_mul_f32 {v(ac+2*e,2)}, {kw}, {ww}")
                    else: A(f"v_pk_fma_f32 {v(ac+2*e,2)}, {kw}, {ww}, {v(ac+2*e,2)}")
            if LQ: A(LQ.pop(0))
            for e in range(4):
                vt = VT + 2 * (e & 1)
                A(f"v_lshlrev_b32 v{vt}, 16, v{VR+4*t+e}"); A(f"v_and_b32 v{vt+1}, s61, v{VR+4*t+e}")
                A(f"v_pk_mul_f32 {v(ac+2*e,2)}, {v(ac+2*e,2)}, {v(vt,2)}")
            if t & 1:
                dw = 3 - ((t & 7) >> 1)
                for d in range(8): A(f"v_cvt_pk_bf16_f32 v{O+4*d+dw}, v{AC+8+d}, v{AC+d}")
            if (t & 7) == 7:
                for d in range(8): A(f"ds_write_b128 v{6 if t < 8 else 5}, {v(O+4*d,4)} offset:{d*128}")
        for t_ in LQ: A(t_)
        hst("computed")
        A(f"v_lshrrev_b32 v10, 3, {L}"); A("v_lshlrev_b32 v11, 12, v10"); A("v_lshl_add_u32 v11, v4, 4, v11")
        A(f"s_mul_i32 s{sT0}, s{sW}, 14")
        A(f"s_lshl_b32 s{sT1}, s{sHW}, 7"); A(f"s_sub_u32 s{sT1}, {WS_KVR+3968}, s{sT1}"); A(f"s_lshl_b32 s{sT2}, s{sT0}, 15"); A(f"s_add_u32 s{sT1}, s{sT1}, s{sT2}")
        A(f"s_lshl_b32 s{sT2}, s{sT0}, 10"); A(f"v_lshl_add_u32 v10, v10, 7, s{sT2}")
        A.wait(alllgkm=True); A("s_barrier")
        for m in range(14):
            A(f"s_add_u32 s{sT2}, s{sT0}, {m}"); A(f"s_and_b32 s{sT2}, s{sT2}, 7"); A(f"v_xor_b32 v12, s{sT2}, v4"); A("v_lshl_add_u32 v12, v12, 4, v10")
            A(f"ds_read_b128 {v(32+4*m,4)}, v12 offset:{m*1024}")
        hst("ldsrd")
        sts = []
        for m in range(14):
            sts.append(A(f"buffer_store_dwordx4 {v(32+4*m,4)}, v11, {srd(rWS)}, s{sT1} offen sc1"))
            A(f"s_add_u32 s{sT1}, s{sT1}, 32768")
        A(f"s_lshl2_add_u32 s{sT0}, s{sHW}, 128"); A(f"s_cmp_eq_u32 s{sW}, 0"); A(f"s_cselect_b32 s{sT0}, s{sT0}, {BIG}")
        A(f"v_mov_b32 v2, {BIG}"); A(f"v_writelane_b32 v2, s{sT0}, 0")
        hst("stissued")
        A(f"s_lshl2_add_u32 s{sT0}, s{sHW}, s{sW}"); A(f"s_mul_i32 s{sT0}, s{sT0}, 14336"); A(f"s_add_u32 s{sT0}, s{sT0}, {WS_YT}"); A(f"v_lshlrev_b32 v3, 4, {L}")
        for e in range(4): A(f"v_mov_b32 v{AC+e}, -1")
        A("v_mov_b32 v8, 1")
        A.wait(allvm=True); A("s_barrier"); A(f"buffer_store_dword v8, v2, {srd(rDBG)}, 0 offen sc1")
        if o.ts: A(f"{o.clk} s[62:63]")
        for m in range(14):
            A(f"buffer_store_dwordx4 {v(AC,4)}, v3, {srd(rWS)}, s{sT0} offen offset:{(m&1)*1024} sc1")
            if m & 1: A(f"s_add_u32 s{sT0}, s{sT0}, 2048")
        A.wait(allvm=True); A("s_barrier"); A(f"buffer_store_dword v7, v2, {srd(rDBG)}, 0 offen sc1")
        if o.ts:
            A("s_waitcnt lgkmcnt(0)"); A("v_mov_b32 v4, s62"); A("v_writelane_b32 v4, s30, 0")
            for k in range(2, hn[0] + 1): A(f"v_writelane_b32 v4, s{66+k}, {k}")
            if True: A(f"v_lshlrev_b32 v2, 2, v0"); A(f"s_lshl_b32 s{sT0}, s2, 10"); A(f"s_add_u32 s{sT0}, s{sT0}, {WS_TS}")
            A(f"buffer_store_dword v4, v2, {srd(rWS)}, s{sT0} offen")
        A("s_endpgm")
        return A

    def build(self):
        A = self.entry()
        self.main(A)
        if self.opt.drop:
            import re
            pats = {"flag": r"buffer_store_dword v51", "yst": r"buffer_store_dwordx2 v\[1(4|5)", "hst": r"buffer_store_dwordx4 v\[(76|80)", "stats": r"v_mfma_f32_4x4x4|v_mfma_f32_16x16x32_bf16 v\[(96|104|108)",
                    "rowst": r"v_mfma_f32_4x4x4|v_mfma_f32_16x16x32_bf16 v\[96", "hld": r"buffer_load_dwordx4 .* v4[0-3], s\[44:47\], s8[1-7]", "dma_d": r"buffer_load_dwordx4 v1[0-3], s\[40",
                    "poll": r"buffer_load_dword v[2-6],", "mfma": r"v_mfma", "dsr": r"ds_read", "vmem": r"buffer_load_dwordx4|buffer_store_dwordx4",
                    "gv": r"v_(exp|rcp|pk_mul|pk_fma|fma|cvt_pk)|v_mul_f32 v(6[89]|7[0-5])", "dmaw": r"buffer_load_dwordx4 v[6-9], s\[36", "dmax": r"buffer_load_dwordx4 v[2-5], s\[32", "geglu": r"v_(exp|rcp)_f32 v(6[89]|7[01]|9[6-9]|10[0-3])"}
            for k in self.opt.drop.split("+"):
                for it in A.items:
                    if isinstance(it, Ins) and re.match(pats[k], it.text): it.__init__("s_nop 0"); it.tag = "gone"
            if self.opt.dropdel:
                keep = [it for it in A.items if not (isinstance(it, Ins) and it.tag == "gone")]
                for it in keep:
                    if isinstance(it, Wait):
                        it.vm = [x for x in it.vm if x.tag != "gone"]; it.lgkm = [x for x in it.lgkm if x.tag != "gone"]
                A.items = keep
        if self.opt.ts:
            self.slow = [x for l in self.slow for x in ([l, f"    s_add_u32 s{22 + int(l[7:-1])}, s{22 + int(l[7:-1])}, 1"] if l.startswith("L_slowl") else [l])]
        t_main = A.finalize(); H = self.helper(); t_help = H.finalize()
        sys.stderr.write(f"main: {A.stats}  helper: {H.stats}\n")
        head = open(self.opt.ref).read().split("; Override launch")[0]
        txt = head + f"; @launch grid=(256,1,1) block=(256,1,1) lds={LDS_BYTES}\n"
        txt += f'.amdgcn_target "amdgcn-amd-amdhsa--gfx950"\n.text\n.globl {NAME}_kernel\n.p2align 8\n.type {NAME}_kernel,@function\n{NAME}_kernel:\n'
        txt += t_main + "\n" + t_help + "\n" + "\n".join(self.slow) + "\nL_exit:\n    s_endpgm\n"
        txt += f""".section .rodata,"a"
.p2align 6
.amdhsa_kernel {NAME}_kernel
  .amdhsa_next_free_vgpr 512
  .amdhsa_next_free_sgpr 102
  .amdhsa_accum_offset 256
  .amdhsa_group_segment_fixed_size 0
  .amdhsa_kernarg_size 104
  .amdhsa_user_sgpr_count 2
  .amdhsa_user_sgpr_kernarg_segment_ptr 1
  .amdhsa_system_sgpr_workgroup_id_x 1
  .amdhsa_float_denorm_mode_32 3
.end_amdhsa_kernel
"""
        if self.opt.align:
            import align
            txt, st = align.align(txt); sys.stderr.write(f"align: misaligned 8-byte instrs {st[0]} -> {st[1]}, widened {st[2]}\n")
        if self.opt.ts: txt = txt.replace("; @launch", "; stamps: " + ",".join(self.tsnames) + ("\n; clk=cycles" if self.opt.clk == "s_memtime" else "") + "\n; @launch", 1)
        return txt

if __name__ == "__main__":
    p = argparse.ArgumentParser()
    p.add_argument("-o", default=f"cdna_kernels/{NAME}.s")
    p.add_argument("--ref", default=f"cdna_kernels/{NAME}.s.ref")
    p.add_argument("--ts", default="")
    p.add_argument("--clk", default="s_memrealtime")
    p.add_argument("--pre_gap", type=int, default=14)
    p.add_argument("--pre2", type=int, default=0)
    p.add_argument("--v3", type=int, default=8)
    p.add_argument("--cgap", type=int, default=3)
    p.add_argument("--pk", type=int, default=1)
    p.add_argument("--nopoll", action="store_true")
    p.add_argument("--yld", type=int, default=17)
    p.add_argument("--xpre", type=int, default=10)
    p.add_argument("--probe0", type=int, default=0)
    p.add_argument("--pollb1", type=int, default=34)
    p.add_argument("--chkb1", type=int, default=40)
    p.add_argument("--sig2", type=int, default=95)
    p.add_argument("--pollb2", type=int, default=144)
    p.add_argument("--chkb2", type=int, default=8)
    p.add_argument("--pollarr", type=int, default=18)
    p.add_argument("--arrchk", type=int, default=23)
    p.add_argument("--bud", type=int, default=24)
    p.add_argument("--hts", type=int, default=0)
    p.add_argument("--hpre", type=int, default=14)
    p.add_argument("--slp", type=int, default=4)
    p.add_argument("--dbgts", type=int, default=0)
    p.add_argument("--outfl", default="")
    p.add_argument("--diagspin", type=int, default=0)
    p.add_argument("--drop", default="")
    p.add_argument("--sig1", type=int, default=29)
    p.add_argument("--e0", type=int, default=5)
    p.add_argument("--xld", type=int, default=100)
    p.add_argument("--burst", type=int, default=1)
    p.add_argument("--p3vl", type=int, default=1)
    p.add_argument("--touch", type=int, default=0)
    p.add_argument("--bar5", type=int, default=1)
    p.add_argument("--v3b", type=int, default=6)
    p.add_argument("--nbts", type=int, default=0)
    p.add_argument("--tsplit", type=int, default=3)
    p.add_argument("--rot2", type=int, default=1)
    p.add_argument("--elate", type=int, default=7)
    p.add_argument("--cgap0", type=int, default=6)
    p.add_argument("--dropdel", type=int, default=1)
    p.add_argument("--tb", type=int, default=0)
    p.add_argument("--td", type=int, default=0)
    p.add_argument("--te", type=int, default=0)
    p.add_argument("--tepos", type=int, default=-1)
    p.add_argument("--hpf", type=int, default=1)
    p.add_argument("--htouch", type=int, default=0)
    p.add_argument("--align", type=int, default=0)
    p.add_argument("--rot", type=int, default=3)
    p.add_argument("--pf", type=int, default=0)
    o = p.parse_args()
    open(o.o, "w").write(Gen(o).build())
```
